```python
import torch

def _softmax(x, axis=-1):
    return torch.softmax(x, dim=axis)
def _gelu(x):
    return torch.nn.functional.gelu(x, approximate="tanh")
def _silu(x):
    return torch.nn.functional.silu(x)
def _sigmoid(x):
    return torch.sigmoid(x)
def _layernorm(x, axis=-1, eps=1e-5):
    m = x.mean(dim=axis, keepdim=True)
    v = x.var(dim=axis, keepdim=True, unbiased=False)
    return (x - m) / torch.sqrt(v + eps)
def _scatter_add(tgt, idx, src, axis=0):
    return tgt.clone().index_add_(axis, idx, src)
def _segment_sum(src, seg, n):
    out = torch.zeros((n,) + src.shape[1:], dtype=src.dtype)
    return out.index_add_(0, seg, src)
def _pad(x, pw):
    flat = tuple(v for pair in reversed(pw) for v in pair)
    return torch.nn.functional.pad(x, flat)

kernel_name = 'standalone__gqa_softmax__near_ridge'

def setup_inputs():

    _w = (lambda a: (lambda t: t.to(torch.bfloat16) if t.is_floating_point() else t)(torch.as_tensor(a)))
    B, Hq, Hkv, Sq, Sk, D = 16, 32, 32, 384, 1024, 128
    return {
        "q": _w((lambda *s: torch.randn(*s, dtype=torch.bfloat16) * 0.8)(B, Hq, Sq, D)),
        "k": _w((lambda *s: torch.randn(*s, dtype=torch.bfloat16) * 0.8)(B, Hkv, Sk, D)),
        "v": _w((lambda *s: torch.randn(*s, dtype=torch.bfloat16) * 0.05)(B, Hkv, Sk, D)),
    }

def reference(q, k, v):
    B, Hq, Sq, D = q.shape
    Hkv = k.shape[1]
    rep = Hq // Hkv
    k = (lambda x, n, axis: torch.repeat_interleave(x, n, dim=axis))(k, rep, axis=1)
    v = (lambda x, n, axis: torch.repeat_interleave(x, n, dim=axis))(v, rep, axis=1)
    scale = D ** -0.5
    scores = torch.einsum("bhqd,bhkd->bhqk", q, k) * scale
    p = _softmax(scores, axis=-1)
    return torch.einsum("bhqk,bhkd->bhqd", p, v)
```

```python
import re
TRANS = ("v_exp_f32","v_log_f32","v_rcp_f32","v_rsq_f32","v_sqrt_f32","v_sin_f32","v_cos_f32")
def expand(op):
    op = op.strip()
    neg = op.lstrip('-')
    if neg.startswith('abs('): neg = neg[4:-1]
    if neg.startswith('|'): neg = neg.strip('|')
    m = re.fullmatch(r'([vas])\[(\d+):(\d+)\]', neg)
    if m: return [m.group(1)+str(i) for i in range(int(m.group(2)), int(m.group(3))+1)]
    m = re.fullmatch(r'([vas])(\d+)', neg)
    if m: return [neg]
    if neg in ('vcc','m0','exec','scc'): return [neg]
    if neg in ('vcc_lo','vcc_hi'): return ['vcc']
    return []
class Ins:
    def __init__(s, text):
        s.text = text
        t = text.split(';')[0].strip()
        s.label = t.endswith(':')
        s.r = []; s.w = []; s.kind = 'other'; s.ws = 1
        if not t or s.label or t.startswith('.'):
            s.kind = 'none'; s.ws = 0; return
        sp = t.split(None, 1)
        s.op = op = sp[0]
        for suf in ('_e32','_e64'):
            if op.endswith(suf): op = op[:-4]
        s.op = op
        rest = sp[1] if len(sp) > 1 else ''
        ops = [o.strip() for o in re.split(r',\s*(?![^\[]*\])', rest)] if rest else []
        if ops:
            last = ops[-1].split()
            s.mods = last[1:]
            ops[-1] = last[0] if last else ''
        else: s.mods = []
        s.ops = ops
        if op.startswith('v_mfma'):
            s.kind = 'mfma'; s.w = expand(ops[0]); s.A = expand(ops[1]); s.B = expand(ops[2]); s.C = expand(ops[3])
            s.r = s.A + s.B + s.C
            s.passes = 8 if '32x32' in op else 4
        elif op.startswith('ds_read'):
            s.kind = 'dsr'; s.w = expand(ops[0]); s.r = expand(ops[1])
        elif op.startswith('ds_write'):
            s.kind = 'dsw'; s.r = sum((expand(o) for o in ops), [])
        elif op.startswith('ds_'):
            s.kind = 'dsr'; s.w = expand(ops[0]); s.r = sum((expand(o) for o in ops[1:]), [])
        elif op.startswith('buffer_load'):
            if 'lds' in s.mods:
                s.kind = 'dma'; s.r = sum((expand(o) for o in ops), []) + ['m0']
            else:
                s.kind = 'vld'; s.w = expand(ops[0]); s.r = sum((expand(o) for o in ops[1:]), [])
        elif op.startswith('buffer_store') or op.startswith('global_store'):
            s.kind = 'vst'; s.r = sum((expand(o) for o in ops), [])
            s.data = expand(ops[0]) if op.startswith('buffer') else expand(ops[1])
            s.wide = op.endswith('x4') or op.endswith('x3')
        elif op.startswith('global_load'):
            s.kind = 'vld'; s.w = expand(ops[0]); s.r = sum((expand(o) for o in ops[1:]), [])
        elif op == 's_waitcnt':
            s.kind = 'wait'; s.vm = None; s.lgkm = None
            m = re.search(r'vmcnt\((\d+)\)', t); s.vm = int(m.group(1)) if m else None
            m = re.search(r'lgkmcnt\((\d+)\)', t); s.lgkm = int(m.group(1)) if m else None
        elif op == 's_nop':
            s.kind = 'nop'; s.ws = int(ops[0], 0) + 1
        elif op.startswith('s_load') or op in ('s_memtime','s_memrealtime'):
            s.kind = 'smem'; s.w = expand(ops[0]); s.r = sum((expand(o) for o in ops[1:]), [])
        elif op.startswith('s_'):
            s.kind = 'salu'
            if op.startswith('s_cmp') : s.r = sum((expand(o) for o in ops), []); s.w=['scc']
            elif op.startswith('s_cbranch') or op in ('s_branch','s_barrier','s_endpgm','s_setprio','s_sleep'): pass
            else:
                s.w = expand(ops[0]) if ops else []; s.r = sum((expand(o) for o in ops[1:]), [])
        elif op.startswith('v_'):
            s.kind = 'valu'
            s.trans = op in TRANS
            if op.startswith('v_cmp'):
                s.w = expand(ops[0]); s.r = sum((expand(o) for o in ops[1:]), [])
            elif op.startswith('v_permlane'):
                s.w = expand(ops[0]) + expand(ops[1]); s.r = list(s.w)
            elif op.startswith('v_fmac') or op.startswith('v_dot2c'):
                s.w = expand(ops[0]); s.r = sum((expand(o) for o in ops), [])
            elif op.startswith('v_readfirstlane') or op.startswith('v_readlane'):
                s.w = expand(ops[0]); s.r = sum((expand(o) for o in ops[1:]), [])
            elif op.startswith('v_add_co') or op.startswith('v_addc_co') or op.startswith('v_sub_co'):
                s.w = expand(ops[0]) + expand(ops[1]); s.r = sum((expand(o) for o in ops[2:]), [])
            else:
                s.w = expand(ops[0]); s.r = sum((expand(o) for o in ops[1:]), [])
def check(lines, verbose=True):
    ins = [Ins(l) for l in lines]
    errs = []
    pos = 0
    last_valu_w = {}
    last_trans_w = {}
    last_mfma_w = {}
    last_mfma_c = {}
    last_valu_sw = {}
    last_store = {}
    last_m0 = -100
    lgkm = []
    vm = []
    pend = {}
    def err(i, msg):
        errs.append("%s  @[%d] %s" % (msg, i, ins[i].text.strip()))
    for i, x in enumerate(ins):
        if x.kind == 'none': continue
        if x.kind != 'wait':
            for r in set(x.r + x.w):
                if r in pend:
                    err(i, "use of %s before %s wait" % (r, pend[r]))
        d = lambda p: pos - p - 1
        if x.kind == 'mfma':
            for r in x.r:
                if r in last_valu_w and d(last_valu_w[r]) < 2: err(i, "VALU->MFMA %s dist %d" % (r, d(last_valu_w[r])))
            for r in x.A + x.B:
                if r in last_mfma_w and d(last_mfma_w[r][0]) < last_mfma_w[r][1].passes + 4: err(i, "MFMA D->A/B %s" % r)
            for r in x.C:
                if r in last_mfma_w:
                    p, y = last_mfma_w[r]
                    if y.w != x.C and d(p) < y.passes + 2: err(i, "MFMA D->C overlap %s" % r)
            for r in x.w:
                if r in last_mfma_w:
                    p, y = last_mfma_w[r]
                    if y.w != x.w or x.C != x.w:
                        if d(p) < y.passes + 2: err(i, "MFMA WAW %s dist %d" % (r, d(p)))
        elif x.kind in ('valu',):
            for r in set(x.r + x.w):
                if r in last_mfma_w:
                    p, y = last_mfma_w[r]
                    if d(p) < y.passes + 4: err(i, "MFMA D->VALU %s dist %d" % (r, d(p)))
            for r in x.w:
                if r in last_mfma_c:
                    p, y = last_mfma_c[r]
                    if d(p) < y.passes - 1: err(i, "MFMA SrcC WAR %s dist %d" % (r, d(p)))
                if r in last_store and d(last_store[r]) < 2: err(i, "store data WAR %s" % r)
            if not x.trans:
                for r in x.r:
                    if r in last_trans_w and d(last_trans_w[r]) < 1: err(i, "trans->use %s" % r)
            if x.op.startswith('v_permlane'):
                for r in x.r:
                    if r in last_valu_w and d(last_valu_w[r]) < 2: err(i, "VALU->permlane %s" % r)
            if x.op.startswith('v_readfirstlane') or x.op.startswith('v_readlane'):
                for r in x.r:
                    if r in last_valu_w and d(last_valu_w[r]) < 1: err(i, "VALU->readlane %s" % r)
            for r in x.r:
                if r in last_valu_sw and d(last_valu_sw[r]) < 2: err(i, "VALU sgpr/vcc ->VALU read %s" % r)
            if 'dpp' in x.text or 'row_' in x.text:
                for r in x.r:
                    if r in last_valu_w and d(last_valu_w[r]) < 2: err(i, "VALU->DPP %s" % r)
        elif x.kind in ('dsr','dsw','vld','vst','dma'):
            for r in set(x.r + x.w):
                if r in last_mfma_w:
                    p, y = last_mfma_w[r]
                    if d(p) < y.passes + 4: err(i, "MFMA D->mem %s dist %d" % (r, d(p)))
            if x.kind in ('vld','vst','dma'):
                for r in x.r:
                    if r in last_valu_sw and d(last_valu_sw[r]) < 5: err(i, "VALU sgpr->VMEM %s" % r)
            if x.kind == 'dma' and d(last_m0) < 1: err(i, "M0->DMA")
        elif x.kind == 'salu':
            for r in x.r:
                if r in last_valu_sw and d(last_valu_sw[r]) < 1 and r != 'vcc': pass
        if x.kind == 'wait':
            if x.lgkm is not None:
                while len(lgkm) > x.lgkm:
                    y = lgkm.pop(0)
                    for r in y:
                        if pend.get(r) == 'lgkm': del pend[r]
            if x.vm is not None:
                while len(vm) > x.vm:
                    y = vm.pop(0)
                    for r in y:
                        if pend.get(r) == 'vm': del pend[r]
        elif x.kind in ('dsr','dsw'):
            lgkm.append(x.w)
            for r in x.w: pend[r] = 'lgkm'
            if len(lgkm) > 15: err(i, "lgkmcnt overflow (%d outstanding)" % len(lgkm))
        elif x.kind == 'smem':
            lgkm.append(x.w); lgkm.append([])
            for r in x.w: pend[r] = 'lgkm'
        elif x.kind in ('vld','vst','dma'):
            vm.append(x.w)
            for r in x.w: pend[r] = 'vm'
            if len(vm) > 63: err(i, "vmcnt overflow (%d outstanding)" % len(vm))
        if x.kind == 'valu':
            for r in x.w:
                if r[0] in 'va' and r != 'vcc': last_valu_w[r] = pos
                else: last_valu_sw[r] = pos
                last_trans_w.pop(r, None); last_mfma_w.pop(r, None)
            if x.trans:
                for r in x.w: last_trans_w[r] = pos
        elif x.kind == 'mfma':
            for r in x.w: last_mfma_w[r] = (pos, x); last_valu_w.pop(r, None)
            for r in x.C: last_mfma_c[r] = (pos, x)
        elif x.kind == 'vst' and x.wide:
            for r in x.data: last_store[r] = pos
        elif x.kind == 'salu':
            if 'm0' in x.w: last_m0 = pos
            for r in x.w: last_valu_sw.pop(r, None)
        elif x.kind in ('dsr','vld'):
            for r in x.w: last_valu_w.pop(r, None); last_mfma_w.pop(r, None)
        pos += x.ws
    return errs
```

```python
import sys, argparse
from asmcheck import check

KN = "standalone__gqa_softmax__near_ridge_kernel"
LOG2E = 1.4426950408889634
CS = LOG2E * (128 ** -0.5)
import struct
def f2u(f): return struct.unpack('<I', struct.pack('<f', f))[0]

class Cfg:
    mode = 'X'
    stamp = False
    nodma = False
    nobar = False
    nt = False
    dist = 2
    noexp = False
    dmapos = (14, 1, 4, 7)
    nosm = False
    nolds = False

SBUF = [16, 64]
CINIT = 112
Q2 = 160
FRAG = 192
KADDR = 208
VADDR = 216
VKOFF = 220; VVOFF = 221; VQOFF = 222
LSUM = 223
MC = 226
TMP = 232
def vr(a, n): return "v[%d:%d]" % (a, a+n-1) if n > 1 else "v%d" % a
def ar(a, n): return "a[%d:%d]" % (a, a+n-1) if n > 1 else "a%d" % a
def S(b, t, r=0): return SBUF[b] + 16*t + r
def O(t, dt): return 64*t + 16*dt
def Qop(t, s): return ar(192 + 32*t + 4*s, 4) if t < 2 else vr(Q2 + 4*s, 4)
def frag(j): return FRAG + 4*(j % 4)

SK, SV, SQ, SO = 4, 8, 12, 16
sTK, sTV = 20, 21
sMK, sMV = 22, 23
sC = 24
sW = 25
sQO = 26
sH = 27
sLOOP = 28
sT0 = 30
sST = 40

class G:
    def __init__(self, cfg):
        self.c = cfg
        self.out = []
        self.trace = []
        self.nst = 0
    def seg(self): return []
    def emit(self, lines, trace=True):
        self.out += lines
        if trace: self.trace += lines

    def kread(self, j, s, slot):
        return ["ds_read_b128 %s, v%d offset:%d" % (vr(frag(j),4), KADDR+s, slot*8192)]
    def vread(self, j, u, dt, slot):
        f = frag(j)
        return ["ds_read_b64_tr_b16 %s, v%d offset:%d" % (vr(f,2), VADDR+dt, slot*8192 + (16*u)*256),
                "ds_read_b64_tr_b16 %s, v%d offset:%d" % (vr(f+2,2), VADDR+dt, slot*8192 + (16*u+8)*256)]

    def g_pv(self, n, u, dt, first=False):
        return dict(kind='pv', n=n, u=u, dt=dt, first=first)
    def g_qk(self, n, s, raw=False):
        return dict(kind='qk', n=n, s=s, raw=raw)
    def g_reads(self, g, j):
        if self.c.nolds: return []
        if g['kind'] == 'pv': return self.vread(j, g['u'], g['dt'], g['n'] & 7)
        return self.kread(j, g['s'], g['n'] & 7)
    def g_mfmas(self, g, j):
        r = []
        f = vr(frag(j), 4)
        for t in range(3):
            if g['kind'] == 'pv':
                b = g['n'] & 1
                acc = ar(O(t, g['dt']), 16)
                c = "0" if (g['first'] and g['u'] == 0) else acc
                r.append("v_mfma_f32_32x32x16_bf16 %s, %s, %s, %s" % (acc, f, vr(S(b, t, 8*g['u']), 4), c))
            else:
                b = g['n'] & 1
                d = vr(S(b, t), 16)
                if g['s'] == 0:
                    if self.c.mode == 'X' and not g['raw']: c = vr(CINIT + 16*t, 16)
                    else: c = "0"
                else: c = d
                r.append("v_mfma_f32_32x32x16_bf16 %s, %s, %s, %s" % (d, f, Qop(t, g['s']), c))
        return r

    def elem(self, k):
        u = k // 24; t = (k % 24) // 8; r = 8*u + (k % 8)
        return t, r
    def sm_stage(self, b, k, stage):
        if self.c.nosm: return []
        t, r = self.elem(k)
        x = S(b, t, r)
        if stage == 'f':
            if self.c.mode == 'Y': return ["v_fma_f32 v%d, v%d, s%d, -v%d" % (x, x, sC, MC+t)]
            return []
        if stage == 'e':
            if self.c.noexp: return ["v_mov_b32 v%d, v%d" % (x, x)]
            return ["v_exp_f32 v%d, v%d" % (x, x)]
        if stage == 'a':
            o = ["v_add_f32 v%d, v%d, v%d" % (LSUM+t, LSUM+t, x)]
            if r & 1:
                u = r >> 3
                dst = S(b, t, 8*u + ((r - 8*u) >> 1))
                o.append("v_cvt_pk_bf16_f32 v%d, v%d, v%d" % (dst, x-1, x))
            return o

    def build(self, groups, j0, nxt, sm, extra=None, pre_reads=False, first_wait=None):
        c = self.c
        extra = extra or {}
        L = []
        allg = groups + nxt
        D = c.dist
        if pre_reads:
            for d in range(D):
                L += self.g_reads(allg[d], j0 + d)
            cnt = sum(len(self.g_reads(allg[d], j0+d)) for d in range(1, D))
            L.append("s_waitcnt lgkmcnt(%d)" % cnt)
        for gi, g in enumerate(groups):
            j = j0 + gi
            mf = self.g_mfmas(g, j)
            rd = self.g_reads(allg[gi + D], j + D) if gi + D < len(allg) else []
            for t in range(3):
                gap = 3*gi + t
                L.append(mf[t])
                f = []
                if t == 0: f += extra.get((gi, 'pre'), [])
                f += extra.get((gi, t), [])
                smi = list(sm.get(gap, []))
                rdi = []
                if t == 0 and rd: rdi = rd[:1]
                if t == 1 and len(rd) > 1: rdi = rd[1:]
                f += smi[:1] + rdi + smi[1:]
                f += extra.get((gi, t, 'post'), [])
                if t == 2 and gi + 1 < len(allg) and not c.nolds:
                    cnt = 0
                    for d in range(2, D+1):
                        if gi + d < len(allg): cnt += len(self.g_reads(allg[gi+d], j+d))
                    f.append("s_waitcnt lgkmcnt(%d)" % cnt)
                L += f
        return L

    def sm_sched(self, items, g0, g1):
        d = {}
        n = len(items)
        for i, it in enumerate(items):
            g = g0 + (i * (g1 - g0)) // n
            d.setdefault(g, []).extend(it)
        return d

    def sm_steady(self, bcur, bprev, delta):
        d = {}
        for g in range(48):
            l = []
            for stage, off in (('e', 0), ('f', -1), ('a', 1)):
                k = g - delta - off
                if 0 <= k < 48: l += self.sm_stage(bcur, k, stage)
                elif k < 0 and bprev is not None: l += self.sm_stage(bprev, k + 48, stage)
            d[g] = l
        return d

    def dma_piece(self, which, j):
        c = self.c
        srd = SK if which == 'K' else SV
        voff = VKOFF if which == 'K' else VVOFF
        so = sTK if which == 'K' else sTV
        return "buffer_load_dwordx4 v%d, s[%d:%d], s%d offen%s%s lds" % (voff, srd, srd+3, so, " offset:1024" if j else "", " nt" if c.nt else "")
    def m0set(self, which, slot):
        base = sMK if which == 'K' else sMV
        return "s_add_u32 m0, s%d, 0x%x" % (base, slot*8192)
    def dma_tile(self, which, slot):
        so = sTK if which == 'K' else sTV
        return [self.m0set(which, slot), "s_nop 0", self.dma_piece(which, 0), self.dma_piece(which, 1), "s_add_u32 s%d, s%d, 0x2000" % (so, so)]
    def dma_extra(self, n, gi_bar, ngroups, kv=('V','K')):
        c = self.c
        if c.nodma: return {}
        e = {}
        return e

    def stamp(self):
        if not self.c.stamp: return []
        i = self.nst; self.nst += 1
        return ["s_memtime s[%d:%d]" % (sST + 2*i, sST + 2*i + 1)]

    def iteration(self, n, first=False, carry_dma=None):
        c = self.c
        groups = [self.g_pv(n, j >> 2, j & 3, first) for j in range(8)] + [self.g_qk(n+2, s) for s in range(8)]
        nxt = [self.g_pv(n+1, 0, 0), self.g_pv(n+1, 0, 1), self.g_pv(n+1, 0, 2)]
        delta = 1 if c.mode == 'Y' else 0
        sm = self.sm_steady((n+1) & 1, n & 1, delta)
        extra = self.bar_dma(n, 16 - c.dist, prev=True, cur=True)
        return self.build(groups, 0, nxt, sm, extra)

    def dma_list(self, n):
        return [([self.m0set('V', n & 7)], self.dma_piece('V', 0), []),
                ([], self.dma_piece('V', 1), ["s_add_u32 s%d, s%d, 0x2000" % (sTV, sTV)]),
                ([self.m0set('K', (n+1) & 7)], self.dma_piece('K', 0), []),
                ([], self.dma_piece('K', 1), ["s_add_u32 s%d, s%d, 0x2000" % (sTK, sTK)])]
    def bar_dma(self, n, gbar, prev, cur, ngroups=16, vm=20):
        c = self.c
        extra = {}
        def put(key, l): extra.setdefault(key, []).extend(l)
        if gbar is not None:
            b = []
            if not c.nodma: b.append("s_waitcnt vmcnt(%d)" % vm)
            if not c.nobar: b.append("s_barrier")
            put((gbar, 'pre'), b)
        if c.nodma: return extra
        for i, pos in enumerate(c.dmapos):
            same = pos >= 14
            if same and cur:
                g = gbar + (pos - 14); nn = n
            elif (not same) and prev:
                g = pos; nn = n - 1
            else: continue
            su, dm, po = self.dma_list(nn)[i]
            put((g, 0), su)
            put((g, 1), [dm])
            put((g, 2), po)
        return extra

    def prologue_setup(self):
        c = self.c
        L = []
        e = L.append
        e("s_cmp_ge_u32 s2, 0x100")
        e("s_cbranch_scc1 L_end")
        e("s_load_dwordx4 s[32:35], s[0:1], 0")
        e("s_load_dwordx4 s[36:39], s[0:1], 16")
        if c.stamp:
            e("s_load_dwordx2 s[60:61], s[0:1], 40")
            e("s_memrealtime s[62:63]")
        e("v_lshrrev_b32 v1, 6, v0")
        e("v_and_b32 v0, 63, v0")
        e("v_readfirstlane_b32 s%d, v1" % sW)
        e("v_and_b32 v2, 31, v0")
        e("v_lshrrev_b32 v3, 5, v0")
        e("v_lshlrev_b32 v4, 8, v2")
        e("v_lshl_add_u32 v%d, v3, 4, v4" % VQOFF)
        e("v_and_b32 v5, 3, v2")
        e("v_lshrrev_b32 v6, 3, v2")
        e("v_lshl_or_b32 v5, v6, 2, v5")
        e("v_xor_b32 v5, v5, v3")
        e("v_lshl_add_u32 v5, v5, 4, v4")
        for s in range(8):
            e("v_xor_b32 v%d, 0x%x, v5" % (KADDR+s, s*32))
        e("v_bfe_u32 v6, v0, 2, 2")
        e("v_and_b32 v7, 3, v0")
        e("v_bfe_u32 v8, v0, 4, 1")
        e("v_lshl_add_u32 v9, v3, 2, v6")
        e("v_lshlrev_b32 v9, 8, v9")
        e("v_lshl_add_u32 v9, v6, 6, v9")
        e("v_lshl_add_u32 v9, v8, 5, v9")
        e("v_lshl_add_u32 v9, v7, 3, v9")
        e("v_add_u32 v9, 0x10000, v9")
        for dt in range(4):
            e("v_xor_b32 v%d, 0x%x, v9" % (VADDR+dt, dt*64))
        e("v_lshrrev_b32 v6, 4, v0")
        e("v_and_b32 v7, 15, v0")
        e("s_lshl_b32 s%d, s%d, 3" % (sT0, sW))
        e("v_add_u32 v8, s%d, v6" % sT0)
        e("v_lshlrev_b32 v8, 8, v8")
        e("v_lshlrev_b32 v9, 2, v6")
        e("v_xor_b32 v9, v9, v7")
        e("v_lshl_add_u32 v%d, v9, 4, v8" % VVOFF)
        e("s_lshl_b32 s%d, s%d, 2" % (sT0, sW))
        e("v_or_b32 v9, s%d, v6" % sT0)
        e("v_xor_b32 v9, v9, v7")
        e("v_lshl_add_u32 v%d, v9, 4, v8" % VKOFF)
        e("s_lshl_b32 s%d, s%d, 11" % (sMK, sW))
        e("s_add_u32 s%d, s%d, 0x10000" % (sMV, sMK))
        e("s_mov_b32 s%d, 0x%x" % (sC, f2u(CS)))
        e("s_mul_i32 s%d, s%d, 0x6000" % (sQO, sW))
        e("s_mov_b32 s%d, 0" % sH)
        e("s_mov_b32 s%d, 0" % sTK)
        e("s_mov_b32 s%d, 0" % sTV)
        e("s_waitcnt lgkmcnt(0)")
        e("s_lshl_b32 s%d, s2, 19" % sT0)
        e("s_add_u32 s%d, s34, s%d" % (SK, sT0)); e("s_addc_u32 s%d, s35, 0" % (SK+1))
        e("s_mov_b32 s%d, 0x80000" % (SK+2)); e("s_mov_b32 s%d, 0x20000" % (SK+3))
        e("s_add_u32 s%d, s36, s%d" % (SV, sT0)); e("s_addc_u32 s%d, s37, 0" % (SV+1))
        e("s_mov_b32 s%d, 0x80000" % (SV+2)); e("s_mov_b32 s%d, 0x20000" % (SV+3))
        e("s_mul_i32 s%d, s2, 0x30000" % sT0)
        e("s_add_u32 s%d, s32, s%d" % (SQ, sT0)); e("s_addc_u32 s%d, s33, 0" % (SQ+1))
        e("s_mov_b32 s%d, 0x30000" % (SQ+2)); e("s_mov_b32 s%d, 0x20000" % (SQ+3))
        e("s_add_u32 s%d, s38, s%d" % (SO, sT0)); e("s_addc_u32 s%d, s39, 0" % (SO+1))
        e("s_mov_b32 s%d, 0x30000" % (SO+2)); e("s_mov_b32 s%d, 0x20000" % (SO+3))
        return L

    def q_loads(self):
        c = self.c
        L = []
        for t in range(3):
            L.append("s_add_u32 s%d, s%d, 0x%x" % (sT0, sQO, t*8192))
            for s in range(8):
                if c.mode == 'X': dst = vr(16 + 32*t + 4*s, 4)
                else: dst = Qop(t, s)
                L.append("buffer_load_dwordx4 %s, v%d, s[%d:%d], s%d offen offset:%d" % (dst, VQOFF, SQ, SQ+3, sT0, 32*s))
        return L
    def q_prescale(self, t):
        L = []
        for i in range(32):
            src = 16 + 32*t + i
            a, b = TMP + (i % 4)*2, TMP + (i % 4)*2 + 1
            L.append("v_lshlrev_b32 v%d, 16, v%d" % (a, src))
            L.append("v_and_b32 v%d, 0xffff0000, v%d" % (b, src))
            L.append("v_mul_f32 v%d, s%d, v%d" % (a, sC, a))
            L.append("v_mul_f32 v%d, s%d, v%d" % (b, sC, b))
            if t < 2:
                L.append("v_cvt_pk_bf16_f32 v%d, v%d, v%d" % (a, a, b))
                L.append("v_accvgpr_write_b32 a%d, v%d" % (192 + 32*t + i, a))
            else:
                L.append("v_cvt_pk_bf16_f32 v%d, v%d, v%d" % (Q2 + i, a, b))
        return L

    def cold_dma(self):
        L = []
        L += self.dma_tile('K', 0)
        for j in range(7):
            L += self.dma_tile('V', j)
            L += self.dma_tile('K', j+1)
        return L

    def first_max(self):
        c = self.c
        L = []
        for t in range(3):
            m = TMP + t
            L.append("v_max3_f32 v%d, v%d, v%d, v%d" % (m, S(0,t,0), S(0,t,1), S(0,t,2)))
            for r in range(3, 15, 2):
                L.append("v_max3_f32 v%d, v%d, v%d, v%d" % (m, m, S(0,t,r), S(0,t,r+1)))
            L.append("v_max_f32 v%d, v%d, v%d" % (m, m, S(0,t,15)))
            L.append("v_mov_b32 v%d, v%d" % (TMP+4+t, m))
        L.append("s_nop 1")
        for t in range(3):
            L.append("v_permlane32_swap_b32 v%d, v%d" % (TMP+t, TMP+4+t))
        L.append("s_nop 1")
        for t in range(3):
            L.append("v_max_f32 v%d, v%d, v%d" % (TMP+t, TMP+t, TMP+4+t))
        for t in range(3):
            if c.mode == 'X':
                L.append("v_sub_f32 v%d, 0, v%d" % (TMP+t, TMP+t))
                for r in range(16): L.append("v_mov_b32 v%d, v%d" % (CINIT+16*t+r, TMP+t))
                for r in range(16): L.append("v_add_f32 v%d, v%d, v%d" % (S(0,t,r), S(0,t,r), TMP+t))
            else:
                L.append("v_mul_f32 v%d, s%d, v%d" % (MC+t, sC, TMP+t))
            L.append("v_mov_b32 v%d, 0" % (LSUM+t))
        return L

    def epilogue(self):
        L = []
        for t in range(3):
            L.append("v_mov_b32 v%d, v%d" % (TMP+t, LSUM+t))
        L.append("s_nop 1")
        for t in range(3):
            L.append("v_permlane32_swap_b32 v%d, v%d" % (LSUM+t, TMP+t))
        L.append("s_nop 1")
        for t in range(3):
            L.append("v_add_f32 v%d, v%d, v%d" % (LSUM+t, LSUM+t, TMP+t))
        for t in range(3):
            L.append("v_rcp_f32 v%d, v%d" % (LSUM+t, LSUM+t))
        L.append("s_nop 7")
        k = 0
        for t in range(3):
            L.append("s_add_u32 s%d, s%d, 0x%x" % (sT0, sQO, t*8192))
            if t == 1: L.append("s_waitcnt vmcnt(40)")
            for dt in range(4):
                for jp in range(2):
                    base = 0 + (k % 2) * 8 if False else None
                    tb = (TMP + 4) if (k % 2) else 0
                    tv = [2,3,4,5,6,7,8,9] if (k % 2 == 0) else [TMP+8+i for i in range(8)]
                    pk = 12 if (k % 2 == 0) else TMP + 4
                    a0 = O(t, dt) + 8*jp
                    for i in range(8): L.append("v_accvgpr_read_b32 v%d, a%d" % (tv[i], a0+i))
                    for i in range(8): L.append("v_mul_f32 v%d, v%d, v%d" % (tv[i], tv[i], LSUM+t))
                    L.append("v_cvt_pk_bf16_f32 v%d, v%d, v%d" % (pk+0, tv[0], tv[1]))
                    L.append("v_cvt_pk_bf16_f32 v%d, v%d, v%d" % (pk+1, tv[2], tv[3]))
                    L.append("v_cvt_pk_bf16_f32 v%d, v%d, v%d" % (pk+2, tv[4], tv[5]))
                    L.append("v_cvt_pk_bf16_f32 v%d, v%d, v%d" % (pk+3, tv[6], tv[7]))
                    L.append("s_nop 1")
                    L.append("v_permlane32_swap_b32 v%d, v%d" % (pk+0, pk+2))
                    L.append("v_permlane32_swap_b32 v%d, v%d" % (pk+1, pk+3))
                    L.append("buffer_store_dwordx4 %s, v%d, s[%d:%d], s%d offen offset:%d" % (vr(pk,4), VQOFF, SO, SO+3, sT0, 64*dt + 32*jp))
                    k += 1
        return L

    def generate(self):
        c = self.c
        E = self.emit
        hdr = ["; GQA/MHA attention forward, hand-scheduled for gfx950 (generated by my own generator script)",
               "; @launch grid=(256,1,1) block=(256,1,1) lds=163840",
               '.amdgcn_target "amdgcn-amd-amdhsa--gfx950"', ".text", ".globl %s" % KN, ".p2align 8",
               ".type %s,@function" % KN, "%s:" % KN]
        self.out += hdr
        E(self.prologue_setup())
        E(self.stamp())
        E(self.q_loads())
        if not c.nodma: E(self.cold_dma())
        def head_code(warm):
            A = []
            vm = (40, 32, 24)
            if c.nodma: vm = (16, 8, 0)
            if c.mode == 'X':
                for t in range(3):
                    A.append("s_waitcnt vmcnt(%d)" % vm[t])
                    A += self.q_prescale(t)
            else:
                A.append("s_waitcnt vmcnt(%d)" % vm[2])
            A.append("s_barrier")
            A += self.stamp()
            g0 = [self.g_qk(0, s, raw=True) for s in range(8)]
            A += self.build(g0, 8, [], {}, pre_reads=True)
            A.append("s_nop 7"); A.append("s_nop 3")
            A += self.first_max()
            g1 = [self.g_qk(1, s) for s in range(8)]
            nxt = [self.g_pv(0, 0, 0), self.g_pv(0, 0, 1), self.g_pv(0, 0, 2)]
            sm = {}
            delta = 1 if c.mode == 'Y' else 0
            seq = []
            for k in range(48):
                pass
            slots = []
            for i in range(48 + 2):
                l = []
                if 0 <= i - 1 < 48: l += self.sm_stage(0, i-1, 'e')
                if i < 48: l += self.sm_stage(0, i, 'f')
                if 0 <= i - 2 < 48: l += self.sm_stage(0, i-2, 'a')
                slots.append(l)
            nkeep = 49 if delta == 0 else 48
            pre = slots[0]
            rest = slots[1:nkeep]
            for i, l in enumerate(rest):
                g = (i * 24) // len(rest)
                sm.setdefault(g, []).extend(l + (["s_nop 0"] if False else []))
            extra = self.bar_dma(-1, 8 - c.dist, prev=False, cur=True)
            A += pre
            A += self.build(g1, 8, nxt, self.fix_trans(sm), extra, pre_reads=True)
            return A
        E(["L_head:"])
        E(head_code(False))
        E(self.stamp())
        it0 = self.iteration(0, first=True)
        E(it0)
        E(["s_mov_b32 s%d, 0" % sLOOP])
        body = [self.iteration(n) for n in range(1, 9)]
        self.out.append("L_loop:")
        for i, b in enumerate(body):
            self.out += b
            if i == 4:
                self.out += ["s_cmp_eq_u32 s%d, 3" % sLOOP, "s_cbranch_scc1 L_tail"]
        self.out += ["s_add_u32 s%d, s%d, 1" % (sLOOP, sLOOP), "s_branch L_loop"]
        for trip in range(4):
            for i, b in enumerate(body):
                if trip == 3 and i > 4: break
                self.trace += b
                if i == 4: self.trace += ["s_cmp_eq_u32 s%d, 3" % sLOOP, "s_cbranch_scc1 L_tail"]
            if trip < 3: self.trace += ["s_add_u32 s%d, s%d, 1" % (sLOOP, sLOOP), "s_branch L_loop"]
        E(["L_tail:"])
        E(self.stamp())
        delta = 1 if c.mode == 'Y' else 0
        g30 = [self.g_pv(30, j >> 2, j & 3) for j in range(8)]
        g31 = [self.g_pv(31, j >> 2, j & 3) for j in range(8)]
        groups = g30 + g31
        sm = {}
        st = self.sm_steady(1, 0, delta)
        for g in range(24 + delta + 1):
            pass
        slots = []
        for i in range(48 + 2):
            l = []
            if 0 <= i - 1 < 48: l += self.sm_stage(1, i-1, 'e')
            if i < 48: l += self.sm_stage(1, i, 'f')
            if 0 <= i - 2 < 48: l += self.sm_stage(1, i-2, 'a')
            slots.append(l)
        spill = {}
        for g in range(0, delta + 1):
            l = []
            for stage, off in (('e', 0), ('a', 1)):
                k = g - delta - off
                if k < 0: l += self.sm_stage(0, k + 48, stage)
            spill[g] = l
        g_first = delta + 1
        n0 = 26
        for i in range(n0):
            g = g_first + (i * (24 - g_first)) // n0
            sm.setdefault(g, []).extend(slots[i])
        n1 = len(slots) - n0
        for i in range(n1):
            g = 24 + (i * 11) // n1
            sm.setdefault(g, []).extend(slots[n0 + i])
        for g, l in spill.items(): sm[g] = l + sm.get(g, [])
        extra = {}
        def put(key, l): extra.setdefault(key, []).extend(l)
        gbar = 8 - c.dist
        if not c.nodma:
            for i, pos in enumerate(c.dmapos):
                if pos < 14:
                    su, dm, po = self.dma_list(29)[i]
                    g = min(pos, gbar - 1)
                    put((g, 0), su); put((g, 1), [dm]); put((g, 2), po)
        b = []
        if not c.nodma: b.append("s_waitcnt vmcnt(20)")
        if not c.nobar: b.append("s_barrier")
        put((gbar, 'pre'), b)
        if not c.nodma:
            for i in range(4):
                su, dm, po = self.dma_list(30)[i]
                g = gbar + 2 + 2*i
                put((g, 0), su); put((g, 1), [dm]); put((g, 2), po)
        E(self.build(groups, 0, [], self.fix_trans(sm), extra))
        E(self.stamp())
        E(["s_cmp_eq_u32 s%d, 1" % sH, "s_cbranch_scc1 L_last"])
        E(["s_add_u32 s%d, s%d, 0x18000" % (sQO, sQO)])
        E(self.q_loads())
        E(["s_sub_u32 s%d, s%d, 0x18000" % (sQO, sQO)])
        E(["s_nop 7"])
        epi = self.epilogue()
        E(epi)
        E(["s_add_u32 s%d, s%d, 0x18000" % (sQO, sQO), "s_mov_b32 s%d, 1" % sH])
        E(self.stamp())
        if c.stamp:
            E(["s_waitcnt lgkmcnt(0)"] + ["s_mov_b32 s%d, s%d" % (72+i, sST+2*i) for i in range(6)])
        E(["s_branch L_head"])
        self.trace += head_code(True)
        self.out += ["L_last:", "s_nop 7", "s_nop 3"]
        self.out += epi
        if c.stamp:
            self.out += self.stamp_out()
        self.out += ["L_end:", "s_endpgm"]
        self.out += [".section .rodata,\"a\"", ".p2align 6", ".amdhsa_kernel %s" % KN,
                     "  .amdhsa_next_free_vgpr 512", "  .amdhsa_next_free_sgpr 96", "  .amdhsa_accum_offset 256",
                     "  .amdhsa_group_segment_fixed_size 0", "  .amdhsa_kernarg_size 48", "  .amdhsa_user_sgpr_count 2",
                     "  .amdhsa_user_sgpr_kernarg_segment_ptr 1", "  .amdhsa_system_sgpr_workgroup_id_x 1",
                     "  .amdhsa_float_denorm_mode_32 3", ".end_amdhsa_kernel"]
        return "\n".join(self.out) + "\n"

    def fix_trans(self, sm):
        return sm

    def stamp_out(self):
        L = ["s_memtime s[%d:%d]" % (sST + 2*self.nst, sST + 2*self.nst + 1), "s_memrealtime s[64:65]", "s_waitcnt lgkmcnt(0) vmcnt(0)"]
        n = self.nst + 1
        L += ["s_lshl_b32 s30, s2, 2", "s_add_u32 s30, s30, s%d" % sW, "s_lshl_b32 s30, s30, 7",
              "s_mov_b32 s68, s60", "s_mov_b32 s69, s61", "s_mov_b32 s70, 0x20000", "s_mov_b32 s71, 0x20000",
              "v_mov_b32 v1, 0", "s_mov_b64 exec, 1"]
        for i in range(6):
            L += ["v_mov_b32 v2, s%d" % (72 + i), "buffer_store_dword v2, v1, s[68:71], s30 offen offset:%d" % (4*i)]
        for i in range(n):
            L += ["v_mov_b32 v2, s%d" % (sST + 2*i), "buffer_store_dword v2, v1, s[68:71], s30 offen offset:%d" % (4*(8+i))]
        L += ["v_mov_b32 v2, s62", "buffer_store_dword v2, v1, s[68:71], s30 offen offset:%d" % (4*28),
              "v_mov_b32 v2, s64", "buffer_store_dword v2, v1, s[68:71], s30 offen offset:%d" % (4*29),
              "s_getreg_b32 s31, hwreg(HW_REG_XCC_ID)", "v_mov_b32 v2, s31", "buffer_store_dword v2, v1, s[68:71], s30 offen offset:%d" % (4*30)]
        return L

def main():
    ap = argparse.ArgumentParser()
    ap.add_argument('-o', default='k.s')
    ap.add_argument('opts', nargs='*')
    a = ap.parse_args()
    c = Cfg()
    for o in a.opts:
        k, _, v = o.partition('=')
        if v == '': v = True
        else:
            try: v = eval(v)
            except Exception: pass
        setattr(c, k, v)
    g = G(c)
    txt = g.generate()
    errs = check(g.trace)
    for e in errs[:40]: print("HAZ:", e)
    print("%s: %d lines, %d hazards" % (a.o, len(g.out), len(errs)))
    open(a.o, 'w').write(txt)
main()
```

```python
import sys, argparse, struct, re
from asmcheck import check

KN = "standalone__gqa_softmax__near_ridge_kernel"
LOG2E = 1.4426950408889634
CS = LOG2E * (128 ** -0.5)
def f2u(f): return struct.unpack('<I', struct.pack('<f', f))[0]

class Cfg:
    stamp = False
    nt = False
    ntq = False
    nto = False
    nodma = False
    nobar = False
    phi = -7
    bargap = 68
    dmagaps = (73, 85, 9, 33)
    pkmul = False
    redo = True
    thr = 30

SBUF = [16, 64]
CINIT = 112
QV = 136
FRAG = 168
KADDR = 200
VADDR = 204
VDOFF = 212
VOOFF = 213
LSUM = 214
MX = 220
TMP = 232
def vr(a, n=1): return "v[%d:%d]" % (a, a+n-1) if n > 1 else "v%d" % a
def ar(a, n=1): return "a[%d:%d]" % (a, a+n-1) if n > 1 else "a%d" % a
def sr(a, n=1): return "s[%d:%d]" % (a, a+n-1) if n > 1 else "s%d" % a
def S(b, qt, e=0): return SBUF[b] + 8*qt + e
def O(qt, dt): return (qt*8 + dt)*4
def Qop(qt, s):
    f = 4*qt + s
    return ar(192 + 4*f, 4) if f < 16 else vr(QV + 4*(f-16), 4)
def frag(j): return FRAG + 4*(j % 8)
MF = "v_mfma_f32_16x16x32_bf16"

sA, sB, sQ, sO = 4, 8, 12, 16
sTA, sTB = 20, 21
sMW = 22
sC = 24; sW = 25
sQO = 26
sH = 27
sLOOP = 28
sT0 = 30
sKB, sVB = 32, 34
sSA, sSB = 36, 37
sQN = 38
sQL = 40
sFLAG = 43
sMODE = 44
sHH = 45
sT2 = 46
KRING, VRING, XREG = 0, 65536, 131072

class G:
    def __init__(self, cfg):
        self.c = cfg
        self.out = []
        self.trace = []
    def emit(self, lines, trace=True):
        self.out += lines
        if trace: self.trace += lines

    def kread(self, j, kt, s, slot):
        return ["ds_read_b128 %s, v%d offset:%d" % (vr(frag(j),4), KADDR+s, slot*8192 + 4096*kt)]
    def vread(self, j, dt, slot):
        f = frag(j)
        return ["ds_read_b64_tr_b16 %s, v%d offset:%d" % (vr(f,2), VADDR+dt, slot*8192),
                "ds_read_b64_tr_b16 %s, v%d offset:%d" % (vr(f+2,2), VADDR+dt, slot*8192 + 4096)]
    def g_pv(self, n, dt, first=False): return dict(kind='pv', n=n, dt=dt, first=first)
    def g_qk(self, n, kt, s, raw=False): return dict(kind='qk', n=n, kt=kt, s=s, raw=raw)
    def g_reads(self, g, j):
        if g['kind'] == 'pv': return self.vread(j, g['dt'], g['n'] & 7)
        return self.kread(j, g['kt'], g['s'], g['n'] & 7)
    def g_mfmas(self, g, j):
        r = []
        f = vr(frag(j), 4)
        b = g['n'] & 1
        for qt in range(6):
            if g['kind'] == 'pv':
                acc = ar(O(qt, g['dt']), 4)
                r.append("%s %s, %s, %s, %s" % (MF, acc, f, vr(S(b, qt), 4), "0" if g['first'] else acc))
            else:
                d = vr(S(b, qt, 4*g['kt']), 4)
                if g['s'] == 0: cc = "0" if g['raw'] else vr(CINIT + 4*qt, 4)
                else: cc = d
                r.append("%s %s, %s, %s, %s" % (MF, d, f, Qop(qt, g['s']), cc))
        return r
    def exp_i(self, b, k): x = S(b, k // 8, k % 8); return "v_exp_f32 v%d, v%d" % (x, x)
    def ac_items(self, b):
        r = []
        for k in range(48):
            qt, e = k // 8, k % 8
            x = S(b, qt, e)
            r.append((k, "v_add_f32 v%d, v%d, v%d" % (LSUM+qt, LSUM+qt, x)))
            if e & 1: r.append((k, "v_cvt_pk_bf16_f32 v%d, v%d, v%d" % (S(b, qt, e >> 1), x-1, x)))
        return r

    def dma(self, srd, so, j, tag, nt=None):
        nt = self.c.nt if nt is None else nt
        return "buffer_load_dwordx4 v%d, %s, s%d offen%s%s lds ; tag=%s" % (VDOFF, sr(srd,4), so, " offset:2048" if j else "", " nt" if nt else "", tag)
    def m0set(self, ldsbase): return "s_add_u32 m0, s%d, 0x%x" % (sMW, ldsbase)
    def tile(self, srd, so, ldsbase, tag, inc=True, nt=None):
        r = [self.m0set(ldsbase), "s_nop 0", self.dma(srd, so, 0, tag, nt), self.dma(srd, so, 1, tag, nt)]
        if inc: r.append("s_add_u32 s%d, s%d, 0x2000" % (so, so))
        return r
    def btag(self, n, hh):
        if 27 <= n <= 30: return "Q%d_%d" % (hh+1, n - 27 + 4)
        m = n + 8
        return "V%d_%d" % (hh + (m >= 32), m % 32)
    def atag(self, n, hh):
        if 27 <= n <= 30: return "Q%d_%d" % (hh+1, n - 27 + 8)
        m = n + 9
        return "K%d_%d" % (hh + (m >= 32), m % 32)
    def dpieces(self, n, hh):
        return [([self.m0set(VRING + (n & 7)*8192)], self.dma(sB, sTB, 0, self.btag(n, hh)), []),
                ([], self.dma(sB, sTB, 1, self.btag(n, hh)), ["s_add_u32 s%d, s%d, 0x2000" % (sTB, sTB)]),
                ([self.m0set(KRING + ((n+1) & 7)*8192)], self.dma(sA, sTA, 0, self.atag(n, hh)), []),
                ([], self.dma(sA, sTA, 1, self.atag(n, hh)), ["s_add_u32 s%d, s%d, 0x2000" % (sTA, sTA)])]
    def vmwait(self, wid, needs): return "s_waitcnt vmcnt(@%s) ; need=%s" % (wid, ",".join(needs))

    def assemble(self, mf, sal, mem, val, tailv=None):
        L = []
        for g, m in enumerate(mf):
            L.append(m)
            L += sal.get(g, []); L += mem.get(g, []); L += val.get(g, [])
        return L

    def plan_reads(self, groups, j0, slots):
        seq = []
        for gi, g in enumerate(groups):
            for r in self.g_reads(g, j0 + gi): seq.append((gi, r))
        assert len(slots) >= len(seq), (len(slots), len(seq))
        return [(slots[i], gi, r) for i, (gi, r) in enumerate(seq)]

    def iteration(self, n, hh, first=False, xq=False):
        c = self.c
        groups = [self.g_pv(n, dt, first) for dt in range(8)] + [self.g_qk(n+2, j >> 2, j & 3) for j in range(8)]
        mf = []
        for j, g in enumerate(groups): mf += self.g_mfmas(g, j)
        sal, mem, val = {}, {}, {}
        put = lambda d, g, l: d.setdefault(g, []).extend(l)
        nxt = [self.g_pv(n+1, dt) for dt in range(8)] + [self.g_qk(n+3, j >> 2, j & 3) for j in range(8)]
        issue = []
        allissue = {}
        def rsched(gs, base):
            rho = 0; r = []
            for j, g in enumerate(gs):
                for txt in self.g_reads(g, j):
                    r.append((4*(rho + c.phi) + 1 + base, j, txt)); rho += 1
            return r
        cur = rsched(groups, 0); nx = rsched(nxt, 96)
        order = [(g, j, t) for (g, j, t) in cur] + [(g, j + 16, t) for (g, j, t) in nx]
        for (g, j, t) in order:
            if 0 <= g < 96: put(mem, g, [t])
        for j in range(1, 17):
            wg = 6*j - 1
            last = max(g for (g, jj, t) in order if jj == j)
            assert last < wg - 3, (j, last, wg)
            cnt = sum(1 for (g, jj, t) in order if last < g < wg)
            put(sal, wg, ["s_waitcnt lgkmcnt(%d)" % cnt])
        bn, bp = (n+1) & 1, n & 1
        for k in range(48): put(val, 2*k, [self.exp_i(bn, k)])
        ac = self.ac_items(bn)
        i = 0
        for g in range(1, 96, 2):
            cap = 2 - len(mem.get(g, []))
            for _ in range(cap):
                assert 2*ac[i][0] + 1 <= g, (n, g, ac[i])
                put(val, g, [ac[i][1]]); i += 1
        assert i == len(ac)
        if not c.nodma: put(sal, c.bargap, [self.vmwait("it%d" % (n % 8 if not first else 100), ["V%d_%d" % (hh + ((n+1) >= 32), (n+1) % 32), "K%d_%d" % (hh + ((n+3) >= 32), (n+3) % 32)])])
        if not c.nobar: put(sal, c.bargap, ["s_barrier"])
        if not c.nodma:
            for i, g in enumerate(c.dmagaps):
                nn = n if g >= c.bargap else n - 1
                su, dm, po = self.dpieces(nn, hh)[i]
                put(sal, g - 1, su); mem[g] = [dm] + mem.get(g, []); put(sal, g + 1, po)
            if xq:
                gaps = [13, 17, 21, 25, 41, 45, 49, 53]
                for z in range(4):
                    g1, g2 = gaps[2*z], gaps[2*z+1]
                    tag = "Q%d_%d" % (hh+1, z)
                    put(sal, g1 - 1, [self.m0set(XREG + z*8192)])
                    put(sal, g1 - 2, ["s_add_u32 s%d, s%d, 0x%x" % (sT0, sQN, z*8192)])
                    pass
        return mf, sal, mem, val

    def iter_text(self, n, hh, first=False, pre=None):
        mf, sal, mem, val = self.iteration(n, hh, first)
        if pre:
            for g, l in pre.items(): sal[g] = l + sal.get(g, [])
        return self.assemble(mf, sal, mem, val)

    def simple_phase(self, groups, j0, nxt_groups, valstream, sal=None, mem_extra=None, pre_reads=True, D=3):
        sal = dict(sal or {}); mem = dict(mem_extra or {})
        put = lambda d, g, l: d.setdefault(g, []).extend(l)
        L = []
        allg = groups + nxt_groups
        if pre_reads:
            for d in range(min(D, len(allg))): L += self.g_reads(allg[d], j0 + d)
            L.append("s_waitcnt lgkmcnt(%d)" % sum(len(self.g_reads(allg[d], j0+d)) for d in range(1, min(D, len(allg)))))
        mf = []
        for gi, g in enumerate(groups):
            mf += self.g_mfmas(g, j0 + gi)
            if gi + D < len(allg):
                rd = self.g_reads(allg[gi + D], j0 + gi + D)
                for i, r in enumerate(rd): put(mem, 6*gi + 1 + 2*i, [r])
            if gi + 1 < len(allg):
                cnt = sum(len(self.g_reads(allg[x], j0 + x)) for x in range(gi + 2, min(gi + D + 1, len(allg))))
                put(sal, 6*gi + 5, ["s_waitcnt lgkmcnt(%d)" % cnt])
        val = {}
        n = len(mf)
        for i, t in enumerate(valstream): put(val, (i * n) // max(1, len(valstream)), [t])
        L += self.assemble(mf, sal, mem, val)
        return L

    def sm_linear(self, b, k0=0, k1=48, lag=2):
        ac = self.ac_items(b)
        L = []; i = 0
        while i < len(ac) and ac[i][0] < k0: i += 1
        for k in range(k0, k1):
            L.append(self.exp_i(b, k))
            while i < len(ac) and ac[i][0] <= k - lag and ac[i][0] < k1:
                L.append(ac[i][1]); i += 1
        L.append("s_nop 0")
        while i < len(ac) and ac[i][0] < k1:
            L.append(ac[i][1]); i += 1
        return L

    def setup(self):
        c = self.c
        L = []; e = L.append
        e("s_cmp_ge_u32 s2, 0x100")
        e("s_cbranch_scc1 L_end")
        e("s_load_dwordx4 s[52:55], s[0:1], 0")
        e("s_load_dwordx4 s[56:59], s[0:1], 16")
        if c.stamp:
            e("s_load_dwordx2 s[60:61], s[0:1], 40")
            e("s_mov_b32 s91, 0")
        e("v_lshrrev_b32 v1, 6, v0")
        e("v_and_b32 v0, 63, v0")
        e("v_readfirstlane_b32 s%d, v1" % sW)
        e("v_and_b32 v2, 15, v0")
        e("v_lshrrev_b32 v3, 4, v0")
        e("v_and_b32 v5, 7, v2")
        e("v_lshlrev_b32 v5, 1, v5")
        e("v_xor_b32 v5, v5, v3")
        e("v_lshlrev_b32 v5, 4, v5")
        e("v_lshl_add_u32 v5, v2, 8, v5")
        for s in range(4): e("v_xor_b32 v%d, 0x%x, v5" % (KADDR+s, s*64))
        e("v_bfe_u32 v6, v0, 2, 2")
        e("v_and_b32 v7, 3, v0")
        e("v_lshl_add_u32 v8, v3, 2, v6")
        e("v_and_b32 v9, 7, v8")
        e("v_lshlrev_b32 v8, 8, v8")
        e("v_lshl_add_u32 v8, v9, 5, v8")
        e("v_lshl_add_u32 v8, v7, 3, v8")
        e("v_add_u32 v8, 0x10000, v8")
        for dt in range(8): e("v_xor_b32 v%d, 0x%x, v8" % (VADDR+dt, dt*32))
        e("v_and_b32 v6, 1, v3")
        e("v_lshrrev_b32 v7, 1, v3")
        e("v_lshlrev_b32 v8, 8, v2")
        e("v_lshl_add_u32 v8, v6, 5, v8")
        e("v_lshl_add_u32 v%d, v7, 4, v8" % VOOFF)
        e("s_and_b32 s%d, s%d, 1" % (sT0, sW))
        e("s_lshr_b32 s%d, s%d, 1" % (sT0+1, sW))
        e("s_lshl_b32 s%d, s%d, 2" % (sT0+1, sT0+1))
        e("s_add_u32 s%d, s%d, s%d" % (sT0+1, sT0+1, sT0))
        e("s_lshl_b32 s%d, s%d, 10" % (sMW, sT0+1))
        e("s_lshl_b32 s%d, s%d, 2" % (sT0, sT0))
        e("v_add_u32 v6, s%d, v3" % sT0)
        e("v_lshlrev_b32 v6, 1, v6")
        e("v_xor_b32 v6, v6, v2")
        e("v_lshlrev_b32 v6, 4, v6")
        e("v_lshl_add_u32 v6, v3, 8, v6")
        e("v_add_u32 v%d, s%d, v6" % (VDOFF, sMW))
        for jj in range(3):
            e("s_mul_i32 s%d, s%d, 3" % (sT0, sW))
            e("s_add_u32 s%d, s%d, %d" % (sT0, sT0, jj))
            e("s_lshl_b32 s%d, s%d, 13" % (sT0+1, sT0))
            e("s_mov_b32 s%d, 0x%x" % (sT2, XREG))
            e("s_cmp_ge_u32 s%d, 4" % sT0)
            e("s_cselect_b32 s%d, 0x%x, s%d" % (sT2, VRING - 8192, sT2))
            e("s_cmp_ge_u32 s%d, 8" % sT0)
            e("s_cselect_b32 s%d, 0x%x, s%d" % (sT2, (-4*8192) & 0xffffffff, sT2))
            e("s_add_u32 s%d, s%d, s%d" % (sQL+jj, sT0+1, sT2))
        e("s_mov_b32 s%d, 0x%x" % (sC, f2u(CS)))
        e("s_mul_i32 s%d, s%d, 0x6000" % (sQO, sW))
        e("s_mov_b32 s%d, 0" % sH)
        e("s_mov_b32 s%d, 0" % sFLAG)
        e("s_mov_b32 s%d, 0" % sMODE)
        e("s_waitcnt lgkmcnt(0)")
        e("s_lshl_b32 s%d, s2, 19" % sT0)
        e("s_add_u32 s%d, s54, s%d" % (sKB, sT0)); e("s_addc_u32 s%d, s55, 0" % (sKB+1))
        e("s_add_u32 s%d, s56, s%d" % (sVB, sT0)); e("s_addc_u32 s%d, s57, 0" % (sVB+1))
        e("s_mul_i32 s%d, s2, 0x30000" % sT0)
        e("s_add_u32 s%d, s52, s%d" % (sQ, sT0)); e("s_addc_u32 s%d, s53, 0" % (sQ+1))
        e("s_mov_b32 s%d, 0x30000" % (sQ+2)); e("s_mov_b32 s%d, 0x20000" % (sQ+3))
        e("s_add_u32 s%d, s58, s%d" % (sO, sT0)); e("s_addc_u32 s%d, s59, 0" % (sO+1))
        e("s_mov_b32 s%d, 0x30000" % (sO+2)); e("s_mov_b32 s%d, 0x20000" % (sO+3))
        e("s_mov_b32 s%d, 0x20000" % (sA+3)); e("s_mov_b32 s%d, 0x20000" % (sB+3))
        return L
    def kv_srds(self):
        return ["s_mov_b32 s%d, s%d" % (sA, sKB), "s_mov_b32 s%d, s%d" % (sA+1, sKB+1), "s_mov_b32 s%d, 0x80000" % (sA+2),
                "s_mov_b32 s%d, s%d" % (sB, sVB), "s_mov_b32 s%d, s%d" % (sB+1, sVB+1), "s_mov_b32 s%d, 0x80000" % (sB+2)]
    def qslot(self, z):
        return XREG + z*8192 if z < 4 else (VRING + (z-1)*8192 if z < 8 else (z-4)*8192)
    def cold_dma(self, hh):
        c = self.c
        L = self.kv_srds()
        L += self.tile(sA, sTA, KRING + 0, "K%d_0" % hh) + self.tile(sA, sTA, KRING + 8192, "K%d_1" % hh)
        L.append("s_mov_b32 s%d, s%d" % (sT0, sQN))
        order = [0, 3, 6, 9, 1, 4, 7, 10, 2, 5, 8, 11]
        for z in order:
            L.append("s_add_u32 s%d, s%d, 0x%x" % (sT0, sQN, z*8192))
            L += self.tile(sQ, sT0, self.qslot(z), "Q%d_%d" % (hh, z), inc=False, nt=c.ntq)
        L += self.tile(sB, sTB, VRING + 0, "V%d_0" % hh)
        L += self.tile(sA, sTA, KRING + 2*8192, "K%d_2" % hh)
        L += self.tile(sB, sTB, VRING + 8192, "V%d_1" % hh)
        L += self.tile(sA, sTA, KRING + 3*8192, "K%d_3" % hh)
        L += self.tile(sB, sTB, VRING + 2*8192, "V%d_2" % hh)
        L += ["s_mov_b32 s%d, s%d" % (sSA, sTA), "s_mov_b32 s%d, s%d" % (sSB, sTB)]
        return L
    def q_consume(self, hh):
        c = self.c
        L = []
        L.append(self.vmwait("q", ["Q%d_%d" % (hh, z) for z in range(12)] + ["K%d_0" % hh, "K%d_1" % hh]))
        L.append("s_barrier")
        L += self.stamp()
        for jj in range(3):
            for s in range(4): L.append("v_add_u32 v%d, s%d, v%d" % (TMP+s, sQL+jj, KADDR+s))
            rd = []
            for h in range(2):
                qt = 2*jj + h
                for s in range(4):
                    rd.append("ds_read_b128 %s, v%d offset:%d" % (vr(16 + 16*qt + 4*s, 4), TMP+s, 4096*h))
            if jj == 0:
                L += rd; continue
            L += rd[:7] + ["s_waitcnt lgkmcnt(7)"] + rd[7:]
            L += self.prescale(2*(jj-1)) + self.prescale(2*(jj-1)+1)
        L.append("s_waitcnt lgkmcnt(0)")
        L.append("s_barrier")
        L += self.kv_srds()
        L += ["s_mov_b32 s%d, s%d" % (sTA, sSA), "s_mov_b32 s%d, s%d" % (sTB, sSB)]
        if not c.nodma:
            for j in range(4):
                L += self.tile(sB, sTB, VRING + (3+j)*8192, "V%d_%d" % (hh, 3+j))
                L += self.tile(sA, sTA, KRING + (4+j)*8192, "K%d_%d" % (hh, 4+j))
        L += self.prescale(4) + self.prescale(5)
        return L
    def prescale(self, qt):
        L = []
        for i in range(16):
            src = 16 + 16*qt + i
            f = 4*qt + (i >> 2)
            a = TMP + 8 + (i % 4)*2; b = a + 1
            L.append("v_lshlrev_b32 v%d, 16, v%d" % (a, src))
            L.append("v_and_b32 v%d, 0xffff0000, v%d" % (b, src))
            if self.c.pkmul:
                L.append("v_pk_mul_f32 %s, %s, s[%d:%d] op_sel_hi:[1,0]" % (vr(a,2), vr(a,2), sC, sC+1))
            else:
                L.append("v_mul_f32 v%d, s%d, v%d" % (a, sC, a))
                L.append("v_mul_f32 v%d, s%d, v%d" % (b, sC, b))
            if f < 16:
                L.append("v_cvt_pk_bf16_f32 v%d, v%d, v%d" % (a, a, b))
                L.append("v_accvgpr_write_b32 a%d, v%d" % (192 + 4*f + (i & 3), a))
            else:
                L.append("v_cvt_pk_bf16_f32 v%d, v%d, v%d" % (QV + 4*(f-16) + (i & 3), a, b))
        return L
    def rowreduce(self, regs, op, t0):
        L = []
        for sw in ("v_permlane16_swap_b32", "v_permlane32_swap_b32"):
            for q, r in enumerate(regs): L.append("v_mov_b32 v%d, v%d" % (t0+q, r))
            L.append("s_nop 0")
            for q, r in enumerate(regs): L.append("%s v%d, v%d" % (sw, r, t0+q))
            L.append("s_nop 0")
            for q, r in enumerate(regs): L.append("%s v%d, v%d, v%d" % (op, r, r, t0+q))
        return L
    def first_max(self):
        L = []
        m = [TMP + q for q in range(6)]
        for q in range(6):
            x = S(0, q)
            L.append("v_max3_f32 v%d, v%d, v%d, v%d" % (m[q], x, x+1, x+2))
            L.append("v_max3_f32 v%d, v%d, v%d, v%d" % (m[q], m[q], x+3, x+4))
            L.append("v_max3_f32 v%d, v%d, v%d, v%d" % (m[q], m[q], x+5, x+6))
            L.append("v_max_f32 v%d, v%d, v%d" % (m[q], m[q], x+7))
        L += self.rowreduce(m, "v_max_f32", TMP+8)
        return L
    def apply_max(self):
        L = []
        for q in range(6):
            m = TMP + q
            L.append("v_sub_f32 v%d, 0, v%d" % (m, m))
            for r in range(4): L.append("v_mov_b32 v%d, v%d" % (CINIT + 4*q + r, m))
            for e in range(8): L.append("v_add_f32 v%d, v%d, v%d" % (S(0,q,e), S(0,q,e), m))
            L.append("v_mov_b32 v%d, 0" % (LSUM+q))
        return L
    def epilogue(self):
        c = self.c
        L = []
        ls = [LSUM + q for q in range(6)]
        L += self.rowreduce(ls, "v_add_f32", TMP+8)
        if c.redo:
            L.append("v_max3_f32 v%d, v%d, v%d, v%d" % (TMP, ls[0], ls[1], ls[2]))
            L.append("v_max3_f32 v%d, v%d, v%d, v%d" % (TMP, TMP, ls[3], ls[4]))
            L.append("v_add_f32 v%d, v%d, v%d" % (TMP+1, ls[0], ls[1]))
        for q in range(6): L.append("v_rcp_f32 v%d, v%d" % (ls[q], ls[q]))
        k = 0
        for qt in range(6):
            L.append("s_add_u32 s%d, s%d, 0x%x" % (sT0, sQO, qt*4096))
            if qt == 3: L.append("s_waitcnt vmcnt(40)")
            for a in range(4):
                tv = 16 + (k % 4)*12
                pk = tv + 8
                x, y = O(qt, 2*a), O(qt, 2*a+1)
                for i in range(4): L.append("v_accvgpr_read_b32 v%d, a%d" % (tv+i, x+i))
                for i in range(4): L.append("v_accvgpr_read_b32 v%d, a%d" % (tv+4+i, y+i))
                for i in range(8): L.append("v_mul_f32 v%d, v%d, v%d" % (tv+i, tv+i, ls[qt]))
                L.append("v_cvt_pk_bf16_f32 v%d, v%d, v%d" % (pk+0, tv+0, tv+1))
                L.append("v_cvt_pk_bf16_f32 v%d, v%d, v%d" % (pk+2, tv+4, tv+5))
                L.append("v_cvt_pk_bf16_f32 v%d, v%d, v%d" % (pk+1, tv+2, tv+3))
                L.append("v_cvt_pk_bf16_f32 v%d, v%d, v%d" % (pk+3, tv+6, tv+7))
                L.append("s_nop 0")
                L.append("v_permlane16_swap_b32 v%d, v%d" % (pk+0, pk+2))
                L.append("v_permlane16_swap_b32 v%d, v%d" % (pk+1, pk+3))
                L.append("buffer_store_dwordx4 %s, v%d, %s, s%d offen offset:%d%s" % (vr(pk,4), VOOFF, sr(sO,4), sT0, 64*a, " nt" if c.nto else ""))
                k += 1
        return L

    def stamp(self):
        if not self.c.stamp: return []
        return ["s_memtime s[92:93]", "s_memrealtime s[94:95]", "s_waitcnt lgkmcnt(0)",
                "s_mov_b32 s90, m0", "s_mov_b32 m0, s91", "s_nop 0", "v_writelane_b32 v229, s92, m0", "v_writelane_b32 v230, s94, m0", "s_mov_b32 m0, s90", "s_add_u32 s91, s91, 1"]
    def stamp_out(self):
        L = self.stamp() + ["s_waitcnt lgkmcnt(0) vmcnt(0)"] + self.stamp()
        L += ["s_lshl_b32 s30, s2, 2", "s_add_u32 s30, s30, s%d" % sW, "s_lshl_b32 s30, s30, 9",
              "s_mov_b32 s68, s60", "s_mov_b32 s69, s61", "s_mov_b32 s70, 0x100000", "s_mov_b32 s71, 0x20000",
              "v_mbcnt_lo_u32_b32 v1, -1, 0", "v_mbcnt_hi_u32_b32 v1, -1, v1", "v_lshlrev_b32 v1, 2, v1",
              "s_getreg_b32 s31, hwreg(HW_REG_XCC_ID)", "v_writelane_b32 v229, s31, 63", "v_writelane_b32 v230, s91, 63",
              "buffer_store_dword v229, v1, s[68:71], s30 offen",
              "buffer_store_dword v230, v1, s[68:71], s30 offen offset:256"]
        return L

    def head_start(self, hh):
        c = self.c
        A = self.q_consume(hh)
        A += self.stamp()
        g0 = [self.g_qk(0, j >> 2, j & 3, raw=True) for j in range(8)]
        A += self.simple_phase(g0, 8, [], [])
        A += ["s_nop 7"]
        A += self.first_max()
        A += self.apply_max()
        g1 = [self.g_qk(1, j >> 2, j & 3) for j in range(8)]
        sal = {}; mem = {}
        put = lambda d, g, l: d.setdefault(g, []).extend(l)
        pre = []
        rho = 0
        nxt = [self.g_pv(0, dt) for dt in range(8)]
        for j, g in enumerate(nxt):
            for t in self.g_reads(g, j):
                gp = 4*(rho + c.phi) + 1
                if gp < 0: pre.append((j, t))
                rho += 1
        gb = 30
        if not c.nodma: put(sal, gb, [self.vmwait("pro", ["V%d_0" % hh, "K%d_2" % hh])])
        if not c.nobar: put(sal, gb, ["s_barrier"])
        for i, (j, t) in enumerate(pre):
            g = max(gb + 1 + 2*i, 6*j + 7)
            g |= 1
            put(mem, g, [t])
        lastread = max(g for g in mem)
        assert lastread < 48, lastread
        if not c.nodma:
            su, dm, po = self.dpieces(-1, hh)[0]; put(sal, gb + 2, su); put(mem, gb + 5, [dm])
            su, dm, po = self.dpieces(-1, hh)[1]; put(mem, gb + 9, [dm]); put(sal, gb + 10, po)
            for i in (2, 3):
                if c.dmagaps[i] >= c.bargap:
                    su, dm, po = self.dpieces(-1, hh)[i]
                    put(sal, gb + 10 + 2*(i-2), su); put(mem, gb + 13 + 2*(i-2), [dm]); put(sal, gb + 14 + 2*(i-2), po)
            assert all((g < c.bargap) == (i >= 2) for i, g in enumerate(c.dmagaps)), "prologue assumes pieces 0,1 in the same iteration, 2,3 in the next"
        sm = self.sm_linear(0)
        ph = self.simple_phase(g1, 8, [], sm, sal=sal, mem_extra=mem)
        A += ph
        A.append("s_waitcnt lgkmcnt(%d)" % max(0, len(pre) - 2))
        A.append("s_nop 0")
        return A

    def tail(self, hh):
        c = self.c
        L = []
        put = lambda d, g, l: d.setdefault(g, []).extend(l)
        groups = [self.g_pv(30, dt) for dt in range(8)]
        mf = []
        for j, g in enumerate(groups): mf += self.g_mfmas(g, j)
        sal, mem, val = {}, {}, {}
        order = []
        rho = 0
        for j, g in enumerate(groups):
            for t in self.g_reads(g, j):
                order.append((4*(rho + c.phi) + 1, j, t)); rho += 1
        for (g, j, t) in order:
            if g >= 0: put(mem, g, [t])
        for j in range(1, 8):
            wg = 6*j - 1
            last = max(g for (g, jj, t) in order if jj == j)
            cnt = sum(1 for (g, jj, t) in order if last < g < wg)
            put(sal, wg, ["s_waitcnt lgkmcnt(%d)" % cnt])
        if not c.nodma:
            for i, g in enumerate(c.dmagaps):
                if g < c.bargap:
                    su, dm, po = self.dpieces(29, hh)[i]
                    gg = 7 + 8*(i-2)
                    put(sal, gg - 1, su); mem[gg] = [dm] + mem.get(gg, []); put(sal, gg + 1, po)
        for k in range(24): put(val, 2*k, [self.exp_i(1, k)])
        ac = self.ac_items(1); i = 0
        for g in range(1, 48, 2):
            for _ in range(2 - min(2, len(mem.get(g, [])))):
                if i < len(ac) and 2*ac[i][0] + 1 <= g and ac[i][0] < 24:
                    put(val, g, [ac[i][1]]); i += 1
        L += self.assemble(mf, sal, mem, val)
        while ac[i][0] < 24: L.append(ac[i][1]); i += 1
        if not c.nodma: L.append(self.vmwait("t30", ["V%d_31" % hh]))
        if not c.nobar: L.append("s_barrier")
        g31 = [self.g_pv(31, dt) for dt in range(8)]
        for j in range(4): L += self.g_reads(g31[j], j)
        if not c.nodma:
            for su, dm, po in self.dpieces(30, hh): L += su + (["s_nop 0"] if su else []) + [dm] + po
        L += self.sm_linear(1, 24, 48)
        L.append("s_waitcnt lgkmcnt(6)")
        mf = []; sal, mem = {}, {}
        for j, g in enumerate(g31):
            mf += self.g_mfmas(g, j)
            if j + 4 < 8:
                rd = self.g_reads(g31[j+4], j+4)
                put(mem, 6*j + 1, [rd[0]]); put(mem, 6*j + 3, [rd[1]])
            if j + 1 < 8:
                cnt = 2*(min(j + 4, 7) - (j + 1))
                put(sal, 6*j + 5, ["s_waitcnt lgkmcnt(%d)" % cnt])
        L += self.assemble(mf, sal, mem, {})
        return L

    def xq_block(self, hh):
        c = self.c
        L = []
        if c.nodma: return L
        for z in range(4):
            L.append("s_add_u32 s%d, s%d, 0x%x" % (sT0, sQN, z*8192))
            L += self.tile(sQ, sT0, XREG + z*8192, "Q%d_%d" % (hh+1, z), inc=False, nt=c.ntq)
        return L
    def qswitch(self, which):
        r, so, sv, z0 = (sB, sTB, sSB, 4) if which == 'B' else (sA, sTA, sSA, 8)
        lab = "L_nosw" + which
        return ["s_cmp_lg_u32 s%d, 3" % sLOOP, "s_cbranch_scc1 %s" % lab,
                "s_mov_b32 s%d, s%d" % (sv, so),
                "s_mov_b32 s%d, s%d" % (r, sQ), "s_mov_b32 s%d, s%d" % (r+1, sQ+1), "s_mov_b32 s%d, 0x30000" % (r+2),
                "s_add_u32 s%d, s%d, 0x%x" % (so, sQN, z0*8192), lab + ":"]

    def generate(self):
        c = self.c
        E = self.emit
        hdr = ["; Attention forward (softmax(Q K^T / sqrt(d)) V), hand-scheduled for gfx950; emitted by my own generator script.",
               "; @launch grid=(256,1,1) block=(256,1,1) lds=163840",
               '.amdgcn_target "amdgcn-amd-amdhsa--gfx950"', ".text", ".globl %s" % KN, ".p2align 8",
               ".type %s,@function" % KN, "%s:" % KN]
        self.out += hdr
        E(self.setup())
        E(self.stamp())
        E(["s_mov_b32 s%d, 0" % sTA, "s_mov_b32 s%d, 0" % sTB, "s_mov_b32 s%d, 0" % sQN])
        E(self.cold_dma(0))
        E([self.vmwait("qc", ["Q0_%d" % z for z in range(12)] + ["K0_0", "K0_1"])])
        static_body = None
        for hh in (0, 1):
            first = hh == 0
            def EE(lines, label=None):
                if first:
                    if label: self.out.append(label)
                    self.out += lines
                self.trace += lines
            EE(self.head_start(hh), "L_head:")
            EE(["s_add_u32 s%d, s%d, 0x18000" % (sQN, sQN)])
            EE(self.stamp())
            EE(self.xq_block(hh))
            EE(self.iter_text(0, hh, first=True))
            EE(["s_mov_b32 s%d, 0" % sLOOP])
            if first: self.out.append("L_loop:")
            for n in range(1, 30):
                pre = None
                txt = []
                if n % 8 == 3: txt += self.qswitch('B')
                if n % 8 == 4: txt += self.qswitch('A')
                txt += self.iter_text(n, hh)
                if n % 2 == 1: txt += self.stamp()
                if n % 8 == 5: txt += ["s_cmp_eq_u32 s%d, 3" % sLOOP, "s_cbranch_scc1 L_tail"]
                if n % 8 == 0: txt += ["s_add_u32 s%d, s%d, 1" % (sLOOP, sLOOP), "s_branch L_loop"]
                if first and n <= 8: self.out += txt
                self.trace += [t for t in txt if not t.endswith(':')]
            EE(self.stamp(), "L_tail:")
            EE(self.tail(hh))
            EE(self.stamp())
            EE(["s_nop 7"])
            epi = self.epilogue()
            EE(epi)
            EE(self.stamp())
            if first:
                self.out += ["s_cmp_eq_u32 s%d, 1" % sH, "s_cbranch_scc1 L_last",
                             "s_add_u32 s%d, s%d, 0x18000" % (sQO, sQO), "s_mov_b32 s%d, 1" % sH, "s_branch L_head", "L_last:"]
        if c.stamp: self.out += self.stamp_out()
        self.out += ["L_end:", "s_endpgm"]
        self.out += [".section .rodata,\"a\"", ".p2align 6", ".amdhsa_kernel %s" % KN,
                     "  .amdhsa_next_free_vgpr 512", "  .amdhsa_next_free_sgpr 96", "  .amdhsa_accum_offset 256",
                     "  .amdhsa_group_segment_fixed_size 0", "  .amdhsa_kernarg_size 48", "  .amdhsa_user_sgpr_count 2",
                     "  .amdhsa_user_sgpr_kernarg_segment_ptr 1", "  .amdhsa_system_sgpr_workgroup_id_x 1",
                     "  .amdhsa_float_denorm_mode_32 3", ".end_amdhsa_kernel"]
        self.resolve()
        return "\n".join(self.out) + "\n"

    def resolve(self):
        q = []
        best = {}
        done = -1
        for t in self.trace:
            s = t.split(';')[0].strip()
            if s.startswith('buffer_') or s.startswith('global_'):
                m = re.search(r'tag=(\S+)', t)
                q.append(m.group(1) if m else None)
            m = re.search(r'vmcnt\(@(\w+)\).*need=(\S+)', t)
            if m:
                wid, needs = m.group(1), m.group(2).split(',')
                last = -1
                for nd in needs:
                    idx = [i for i, x in enumerate(q) if x == nd]
                    assert len(idx) == 2, (wid, nd, idx)
                    last = max(last, idx[-1])
                best.setdefault(wid, 63)
                if last > done:
                    best[wid] = min(best[wid], len(q) - 1 - last)
                    done = last
            else:
                m = re.search(r'vmcnt\((\d+)\)', s)
                if m: done = max(done, len(q) - 1 - int(m.group(1)))
        self.vm = best
        fix = lambda t: re.sub(r'vmcnt\(@(\w+)\)', lambda m: "vmcnt(%d)" % min(63, best[m.group(1)]), t)
        self.out = [fix(t) for t in self.out]
        self.trace = [fix(t) for t in self.trace]

def main():
    ap = argparse.ArgumentParser()
    ap.add_argument('-o', default='k.s')
    ap.add_argument('opts', nargs='*')
    a = ap.parse_args()
    c = Cfg()
    for o in a.opts:
        k, _, v = o.partition('=')
        if v == '': v = True
        else:
            try: v = eval(v)
            except Exception: pass
        setattr(c, k, v)
    g = G(c)
    txt = g.generate()
    errs = check(g.trace)
    for e in errs[:40]: print("HAZ:", e)
    print("%s: %d lines, %d hazards, vm=%s" % (a.o, len(g.out), len(errs), g.vm))
    open(a.o, 'w').write(txt)
if __name__ == "__main__": main()
```

```python
import sys, argparse, struct, re
from asmcheck import check

KN = "standalone__gqa_softmax__near_ridge_kernel"
LOG2E = 1.4426950408889634
CS = LOG2E * (128 ** -0.5)
def f2u(f): return struct.unpack('<I', struct.pack('<f', f))[0]

class Cfg:
    stamp = False
    nt = True
    ntq = True
    nto = False
    nodma = False
    nobar = False
    summ = 'add'
    phi = -7
    bargap = 68
    dmagaps = (73, 85, 9, 33)
    redo = True
    thr = 32
    stampit = True

SBUF = [16, 64]
QH = 112
CINIT = 208
KADDR = 232
VADDR = 236
VDOFF = 244
VOOFF = 245
LSUM = 246
STV = 252
TMP = 0
AFRAG = 192
ALS = 224
AONE = 248
AMX = 224
def vr(a, n=1): return "v[%d:%d]" % (a, a+n-1) if n > 1 else "v%d" % a
def ar(a, n=1): return "a[%d:%d]" % (a, a+n-1) if n > 1 else "a%d" % a
def sr(a, n=1): return "s[%d:%d]" % (a, a+n-1) if n > 1 else "s%d" % a
def S(b, qt, e=0): return SBUF[b] + 8*qt + e
def O(qt, dt): return (qt*8 + dt)*4
def Qop(qt, s): return vr(QH + 16*qt + 4*s, 4)
def frag(j): return AFRAG + 4*(j % 8)
MF = "v_mfma_f32_16x16x32_bf16"

sA, sB, sQ, sO = 4, 8, 12, 16
sTA, sTB = 20, 21
sMW = 22
sIA, sIB = 23, 29
sC = 24; sW = 25
sQO = 26
sPO = 27
sLOOP = 28
sT0 = 30
sKB, sVB = 32, 34
sSA, sSB = 36, 37
sQN = 38
sHH = 39
sQL = 40
sFLAG = 43
sMODE = 44
sPEND = 45
sFIN = 46
sPH = 47
sT2 = 48
KRING, VRING, XREG = 0, 65536, 131072

def put(d, g, l): d.setdefault(g, []).extend(l)

class G:
    def __init__(self, cfg):
        self.c = cfg
        self.out = []
        self.trace = []
        self.traces = []

    def kread(self, j, kt, s, slot):
        return ["ds_read_b128 %s, v%d offset:%d" % (ar(frag(j),4), KADDR+s, slot*8192 + 4096*kt)]
    def vread(self, j, dt, slot):
        f = frag(j)
        return ["ds_read_b64_tr_b16 %s, v%d offset:%d" % (ar(f,2), VADDR+dt, slot*8192),
                "ds_read_b64_tr_b16 %s, v%d offset:%d" % (ar(f+2,2), VADDR+dt, slot*8192 + 4096)]
    def g_pv(self, n, dt, first=False): return dict(kind='pv', n=n, dt=dt, first=first)
    def g_qk(self, n, kt, s, raw=False): return dict(kind='qk', n=n, kt=kt, s=s, raw=raw)
    def g_reads(self, g, j):
        if g['kind'] == 'pv': return self.vread(j, g['dt'], g['n'] & 7)
        return self.kread(j, g['kt'], g['s'], g['n'] & 7)
    def g_mfmas(self, g, j):
        r = []
        f = ar(frag(j), 4)
        b = g['n'] & 1
        for qt in range(6):
            if g['kind'] == 'pv':
                acc = ar(O(qt, g['dt']), 4)
                r.append("%s %s, %s, %s, %s" % (MF, acc, f, vr(S(b, qt), 4), "0" if g['first'] else acc))
            else:
                d = vr(S(b, qt, 4*g['kt']), 4)
                if g['s'] == 0: cc = "0" if g['raw'] else vr(CINIT + 4*qt, 4)
                else: cc = d
                r.append("%s %s, %s, %s, %s" % (MF, d, f, Qop(qt, g['s']), cc))
        if g['kind'] == 'pv' and self.c.summ == 'mfma' and g['dt'] < 6:
            qt = g['dt']; acc = ar(ALS + 4*qt, 4)
            r.append("%s %s, %s, %s, %s" % (MF, acc, ar(AONE, 4), vr(S(b, qt), 4), "0" if g['first'] else acc))
        return r
    def exp_i(self, b, k): x = S(b, k // 8, k % 8); return "v_exp_f32 v%d, v%d" % (x, x)
    def ac_items(self, b):
        r = []
        for k in range(48):
            qt, e = k // 8, k % 8
            x = S(b, qt, e)
            if self.c.summ == 'add': r.append((k, "v_add_f32 v%d, v%d, v%d" % (LSUM+qt, LSUM+qt, x)))
            if e & 1: r.append((k, "v_cvt_pk_bf16_f32 v%d, v%d, v%d" % (S(b, qt, e >> 1), x-1, x)))
        return r
    def pace_softmax(self, b, N, mem, val, k0=0, k1=48, g0=0, g1=None):
        g1 = N if g1 is None else g1
        ac = [x for x in self.ac_items(b) if k0 <= x[0] < k1]
        k = k0; i = 0; donegap = {}
        span = g1 - g0
        for g in range(g0, g1):
            cap = 2 - len(mem.get(g, [])) - len(val.get(g, []))
            tgt = g0 + ((k - k0) * span) // (k1 - k0) if k < k1 else None
            if k < k1 and cap == 2 and tgt <= g:
                put(val, g, [self.exp_i(b, k)]); donegap[k] = g; k += 1
                continue
            while cap > 0 and i < len(ac) and ac[i][0] in donegap and donegap[ac[i][0]] < g:
                put(val, g, [ac[i][1]]); i += 1; cap -= 1
        left = []
        while k < k1: left.append(self.exp_i(b, k)); k += 1
        if left: left.append("s_nop 0")
        left2 = [t for (_, t) in ac[i:]]
        return left, left2

    def dma(self, srd, so, j, tag, nt=None):
        nt = self.c.nt if nt is None else nt
        return "buffer_load_dwordx4 v%d, %s, s%d offen%s%s lds ; tag=%s" % (VDOFF, sr(srd,4), so, " offset:2048" if j else "", " nt" if nt else "", tag)
    def m0set(self, ldsbase): return "s_add_u32 m0, s%d, 0x%x" % (sMW, ldsbase)
    def tile(self, srd, so, ldsbase, tag, inc=None, nt=None):
        r = [self.m0set(ldsbase), "s_nop 0", self.dma(srd, so, 0, tag, nt), self.dma(srd, so, 1, tag, nt)]
        if inc: r.append("s_add_u32 s%d, s%d, %s" % (so, so, inc))
        return r
    def btag(self, n, hh):
        if 27 <= n <= 30: return "Q%d_%d" % (hh+1, 3*(n - 27) + 1)
        m = n + 8
        return "V%d_%d" % (hh + (m >= 32), m % 32)
    def atag(self, n, hh):
        if 27 <= n <= 30: return "Q%d_%d" % (hh+1, 3*(n - 27) + 2)
        m = n + 9
        return "K%d_%d" % (hh + (m >= 32), m % 32)
    def dpieces(self, n, hh):
        return [([self.m0set(VRING + (n & 7)*8192)], self.dma(sB, sTB, 0, self.btag(n, hh)), []),
                ([], self.dma(sB, sTB, 1, self.btag(n, hh)), ["s_add_u32 s%d, s%d, s%d" % (sTB, sTB, sIB)]),
                ([self.m0set(KRING + ((n+1) & 7)*8192)], self.dma(sA, sTA, 0, self.atag(n, hh)), []),
                ([], self.dma(sA, sTA, 1, self.atag(n, hh)), ["s_add_u32 s%d, s%d, s%d" % (sTA, sTA, sIA)])]
    def vmwait(self, wid, needs): return "s_waitcnt vmcnt(@%s) ; need=%s" % (wid, ",".join(needs))

    def assemble(self, mf, sal, mem, val):
        L = []
        for g, m in enumerate(mf):
            L.append(m)
            L += sal.get(g, []); L += mem.get(g, []); L += val.get(g, [])
        return L

    def layout(self, groups, j0=0):
        mf = []; start = []
        for j, g in enumerate(groups):
            start.append(len(mf)); mf += self.g_mfmas(g, j0 + j)
        return mf, start
    def steady_reads(self, groups, N):
        r = []; rho = 0
        for j, g in enumerate(groups):
            for t in self.g_reads(g, j):
                gp = ((rho + self.c.phi) * N) // 24
                gp = gp + 1 if N == 96 else gp
                r.append((gp, j, t)); rho += 1
        return r

    def iteration(self, n, hh, first=False):
        c = self.c
        groups = [self.g_pv(n, dt, first) for dt in range(8)] + [self.g_qk(n+2, j >> 2, j & 3) for j in range(8)]
        mf, start = self.layout(groups)
        N = len(mf)
        sal, mem, val = {}, {}, {}
        nxt = [self.g_pv(n+1, dt) for dt in range(8)] + [self.g_qk(n+3, j >> 2, j & 3) for j in range(8)]
        order = self.steady_reads(groups, N) + [(g + N, j + 16, t) for (g, j, t) in self.steady_reads(nxt, N)]
        for (g, j, t) in order:
            if 0 <= g < N: put(mem, g, [t])
        bargap = c.bargap if N == 96 else min(g for (g, j, t) in order if j == 16) - 1
        for j in range(1, 17):
            wg = (start[j] if j < 16 else N) - 1
            last = max(g for (g, jj, t) in order if jj == j)
            assert last < wg - 3, (j, last, wg)
            cnt = sum(1 for (g, jj, t) in order if last < g < wg)
            put(sal, wg, ["s_waitcnt lgkmcnt(%d)" % cnt])
        if not c.nodma: put(sal, bargap, [self.vmwait("it%d" % (n % 8 if not first else 100), ["V%d_%d" % (hh + ((n+1) >= 32), (n+1) % 32), "K%d_%d" % (hh + ((n+3) >= 32), (n+3) % 32)])])
        if not c.nobar: put(sal, bargap, ["s_barrier"])
        if not c.nodma:
            for i, g in enumerate(c.dmagaps):
                nn = n if i < 2 else n - 1
                g = (g * N) // 96
                if N != 96:
                    while g in mem or (i < 2 and g <= bargap + 1): g += 1
                su, dm, po = self.dpieces(nn, hh)[i]
                put(sal, g - 1, su); mem[g] = [dm] + mem.get(g, []); put(sal, g + 1, po)
        l1, l2 = self.pace_softmax((n+1) & 1, N, mem, val)
        assert not l1, (n, l1)
        L = self.assemble(mf, sal, mem, val)
        return L + l2

    def simple_phase(self, groups, j0, valstream, sal=None, mem_extra=None, D=3):
        sal = dict(sal or {}); mem = dict(mem_extra or {})
        L = []
        for d in range(min(D, len(groups))): L += self.g_reads(groups[d], j0 + d)
        L.append("s_waitcnt lgkmcnt(%d)" % sum(len(self.g_reads(groups[d], j0+d)) for d in range(1, min(D, len(groups)))))
        mf, start = self.layout(groups, j0)
        for gi, g in enumerate(groups):
            if gi + D < len(groups):
                for i, r in enumerate(self.g_reads(groups[gi + D], j0 + gi + D)): put(mem, start[gi] + 1 + 2*i, [r])
            if gi + 1 < len(groups):
                cnt = sum(len(self.g_reads(groups[x], j0 + x)) for x in range(gi + 2, min(gi + D + 1, len(groups))))
                put(sal, start[gi+1] - 1, ["s_waitcnt lgkmcnt(%d)" % cnt])
        val = {}
        n = len(mf)
        for i, t in enumerate(valstream): put(val, (i * n) // max(1, len(valstream)), [t])
        return L + self.assemble(mf, sal, mem, val)

    def sm_linear(self, b, k0=0, k1=48, lag=2):
        ac = [x for x in self.ac_items(b) if k0 <= x[0] < k1]
        L = []; i = 0
        for k in range(k0, k1):
            L.append(self.exp_i(b, k))
            while i < len(ac) and ac[i][0] <= k - lag:
                L.append(ac[i][1]); i += 1
        L.append("s_nop 0")
        L += [t for (_, t) in ac[i:]]
        return L

    def setup(self):
        c = self.c
        L = []; e = L.append
        e("s_cmp_ge_u32 s2, 0x100")
        e("s_cbranch_scc1 L_end")
        e("s_load_dwordx4 s[52:55], s[0:1], 0")
        e("s_load_dwordx4 s[56:59], s[0:1], 16")
        if c.stamp:
            e("s_load_dwordx2 s[60:61], s[0:1], 40")
            e("s_mov_b32 s91, 0")
        e("v_lshrrev_b32 v1, 6, v0")
        e("v_and_b32 v0, 63, v0")
        e("v_readfirstlane_b32 s%d, v1" % sW)
        e("v_and_b32 v2, 15, v0")
        e("v_lshrrev_b32 v3, 4, v0")
        e("s_and_b32 s%d, s%d, 1" % (sT0, sW))
        e("s_lshr_b32 s%d, s%d, 1" % (sT0+1, sW))
        e("s_lshl_b32 s%d, s%d, 2" % (sT0+1, sT0+1))
        e("s_add_u32 s%d, s%d, s%d" % (sT0+1, sT0+1, sT0))
        e("s_lshl_b32 s%d, s%d, 10" % (sMW, sT0+1))
        e("s_lshl_b32 s%d, s%d, 2" % (sT0, sT0))
        e("v_add_u32 v6, s%d, v3" % sT0)
        e("v_lshlrev_b32 v6, 1, v6")
        e("v_xor_b32 v6, v6, v2")
        e("v_lshlrev_b32 v6, 4, v6")
        e("v_lshl_add_u32 v6, v3, 8, v6")
        e("v_add_u32 v%d, s%d, v6" % (VDOFF, sMW))
        e("s_mov_b32 s%d, 0x%x" % (sC, f2u(CS)))
        e("s_mov_b32 s%d, 0" % sFLAG)
        e("s_mov_b32 s%d, 0" % sMODE)
        e("s_mov_b32 s%d, 0" % sHH)
        e("s_waitcnt lgkmcnt(0)")
        e("s_lshl_b32 s%d, s2, 19" % sT0)
        e("s_add_u32 s%d, s54, s%d" % (sKB, sT0)); e("s_addc_u32 s%d, s55, 0" % (sKB+1))
        e("s_add_u32 s%d, s56, s%d" % (sVB, sT0)); e("s_addc_u32 s%d, s57, 0" % (sVB+1))
        e("s_mul_i32 s%d, s2, 0x30000" % sT0)
        e("s_add_u32 s%d, s52, s%d" % (sQ, sT0)); e("s_addc_u32 s%d, s53, 0" % (sQ+1))
        e("s_mov_b32 s%d, 0x30000" % (sQ+2)); e("s_mov_b32 s%d, 0x20000" % (sQ+3))
        e("s_add_u32 s%d, s58, s%d" % (sO, sT0)); e("s_addc_u32 s%d, s59, 0" % (sO+1))
        e("s_mov_b32 s%d, 0x30000" % (sO+2)); e("s_mov_b32 s%d, 0x20000" % (sO+3))
        e("s_mov_b32 s%d, 0x20000" % (sA+3)); e("s_mov_b32 s%d, 0x20000" % (sB+3))
        return L
    def setup2(self):
        c = self.c
        L = []; e = L.append
        e("v_mbcnt_lo_u32_b32 v0, -1, 0"); e("v_mbcnt_hi_u32_b32 v0, -1, v0")
        e("v_and_b32 v2, 15, v0"); e("v_lshrrev_b32 v3, 4, v0")
        e("v_and_b32 v5, 7, v2")
        e("v_lshlrev_b32 v5, 1, v5")
        e("v_xor_b32 v5, v5, v3")
        e("v_lshlrev_b32 v5, 4, v5")
        e("v_lshl_add_u32 v5, v2, 8, v5")
        for s in range(4): e("v_xor_b32 v%d, 0x%x, v5" % (KADDR+s, s*64))
        e("v_bfe_u32 v6, v0, 2, 2")
        e("v_and_b32 v7, 3, v0")
        e("v_lshl_add_u32 v8, v3, 2, v6")
        e("v_and_b32 v9, 7, v8")
        e("v_lshlrev_b32 v8, 8, v8")
        e("v_lshl_add_u32 v8, v9, 5, v8")
        e("v_lshl_add_u32 v8, v7, 3, v8")
        e("v_add_u32 v8, 0x10000, v8")
        for dt in range(8): e("v_xor_b32 v%d, 0x%x, v8" % (VADDR+dt, dt*32))
        e("v_lshlrev_b32 v%d, 4, v0" % VOOFF)
        e("s_lshl_b32 s%d, s%d, 13" % (sT0, sW))
        e("s_add_u32 s%d, s%d, 0x%x" % (sQL, sT0, XREG))
        e("s_add_u32 s%d, s%d, 0x%x" % (sQL+1, sT0, VRING + 3*8192))
        e("s_add_u32 s%d, s%d, 0x%x" % (sQL+2, sT0, KRING + 4*8192))
        if c.summ == 'mfma':
            e("v_mov_b32 v4, 0x3f803f80")
            for i in range(4): e("v_accvgpr_write_b32 a%d, v4" % (AONE+i))
        return L
    def kv_srds(self):
        return ["s_mov_b32 s%d, s%d" % (sA, sKB), "s_mov_b32 s%d, s%d" % (sA+1, sKB+1), "s_mov_b32 s%d, 0x80000" % (sA+2),
                "s_mov_b32 s%d, s%d" % (sB, sVB), "s_mov_b32 s%d, s%d" % (sB+1, sVB+1), "s_mov_b32 s%d, 0x80000" % (sB+2),
                "s_mov_b32 s%d, 0x2000" % sIA, "s_mov_b32 s%d, 0x2000" % sIB]
    def qslot(self, z):
        w, jj = divmod(z, 3)
        return (XREG + w*8192, VRING + (3+w)*8192, KRING + (4+w)*8192)[jj]
    def cold_dma(self, hh):
        c = self.c
        L = self.kv_srds()
        L += ["s_lshl_b32 s%d, s%d, 18" % (sTA, sHH), "s_mov_b32 s%d, s%d" % (sTB, sTA),
              "s_mul_i32 s%d, s%d, 0x18000" % (sQN, sHH),
              "s_mul_i32 s%d, s%d, 0x6000" % (sQO, sW), "s_add_u32 s%d, s%d, s%d" % (sQO, sQO, sQN),
              "s_mov_b32 s%d, 0" % sPEND, "s_mov_b32 s%d, 0" % sFIN]
        I = "0x2000"
        L += self.tile(sA, sTA, KRING + 0, "K%d_0" % hh, I)
        for z in [0, 3, 6, 9, 1, 4, 7, 10, 2, 5, 8, 11]:
            L.append("s_add_u32 s%d, s%d, 0x%x" % (sT0, sQN, z*8192))
            L += self.tile(sQ, sT0, self.qslot(z), "Q%d_%d" % (hh, z), nt=c.ntq)
        L += self.tile(sA, sTA, KRING + 8192, "K%d_1" % hh, I)
        L += self.tile(sB, sTB, VRING + 0, "V%d_0" % hh, I)
        L += self.tile(sA, sTA, KRING + 2*8192, "K%d_2" % hh, I)
        L += self.tile(sB, sTB, VRING + 8192, "V%d_1" % hh, I)
        L += self.tile(sA, sTA, KRING + 3*8192, "K%d_3" % hh, I)
        L += self.tile(sB, sTB, VRING + 2*8192, "V%d_2" % hh, I)
        L += ["s_mov_b32 s%d, s%d" % (sSA, sTA), "s_mov_b32 s%d, s%d" % (sSB, sTB)]
        return L
    def burst(self, hh):
        r = []
        for j in range(4):
            for srd, so, base, tag in ((sB, sTB, VRING + (3+j)*8192, "V%d_%d" % (hh, 3+j)), (sA, sTA, KRING + (4+j)*8192, "K%d_%d" % (hh, 4+j))):
                r.append(([self.m0set(base)], self.dma(srd, so, 0, tag), []))
                r.append(([], self.dma(srd, so, 1, tag), ["s_add_u32 s%d, s%d, 0x2000" % (so, so)]))
        return r
    def q_consume(self, hh, cold, static=False):
        c = self.c
        L = []
        def reads(jj):
            r = []
            for s in range(4): r.append("v_add_u32 v%d, s%d, v%d" % (TMP+s, sQL+jj, KADDR+s))
            for h in range(2):
                for s in range(4):
                    r.append("ds_read_b128 %s, v%d offset:%d" % (Qop(2*jj+h, s), TMP+s, 4096*h))
            return r
        for jj in range(3):
            needs = ["Q%d_%d" % (hh, 3*w + jj) for w in range(4)] + (["K%d_0" % hh, "K%d_1" % hh] if jj == 2 else [])
            wc = self.vmwait("q%dc" % jj, needs); ww = self.vmwait("q%dw" % jj, needs)
            if static:
                L += [wc, "s_cmp_eq_u32 s%d, 0" % sPEND, "s_cbranch_scc1 L_qw%d" % jj, ww, "L_qw%d:" % jj]
            else:
                L += [wc if cold else ww]
            L.append("s_barrier")
            if jj == 0: L += self.stamp()
            rd = reads(jj)
            if jj > 0:
                L += rd[:-1] + ["s_waitcnt lgkmcnt(7)"] + rd[-1:]
                L += self.prescale(2*(jj-1)) + self.prescale(2*(jj-1)+1)
            else: L += rd
        L.append("s_waitcnt lgkmcnt(0)")
        L.append("s_barrier")
        L += self.kv_srds()
        L += ["s_mov_b32 s%d, s%d" % (sTA, sSA), "s_mov_b32 s%d, s%d" % (sTB, sSB)]
        ps = self.prescale(4) + self.prescale(5)
        if not c.nodma:
            bl = self.burst(hh)
            step = len(ps) // len(bl)
            o = []
            for i, (su, dm, po) in enumerate(bl):
                o += su + ps[i*step:i*step + 2] + [dm] + po + ps[i*step + 2:(i+1)*step]
            o += ps[len(bl)*step:]
            ps = o
        L += ps
        return L
    def prescale(self, qt):
        L = []
        for i in range(16):
            x = QH + 16*qt + i
            a = TMP + 4 + (i % 4)*2; b = a + 1
            L.append("v_lshlrev_b32 v%d, 16, v%d" % (a, x))
            L.append("v_and_b32 v%d, 0xffff0000, v%d" % (b, x))
            L.append("v_mul_f32 v%d, s%d, v%d" % (a, sC, a))
            L.append("v_mul_f32 v%d, s%d, v%d" % (b, sC, b))
            L.append("v_cvt_pk_bf16_f32 v%d, v%d, v%d" % (x, a, b))
        return L
    def rowreduce(self, regs, op, t0):
        L = []
        for sw in ("v_permlane16_swap_b32", "v_permlane32_swap_b32"):
            for q, r in enumerate(regs): L.append("v_mov_b32 v%d, v%d" % (t0+q, r))
            L.append("s_nop 0")
            for q, r in enumerate(regs): L.append("%s v%d, v%d" % (sw, r, t0+q))
            L.append("s_nop 0")
            for q, r in enumerate(regs): L.append("%s v%d, v%d, v%d" % (op, r, r, t0+q))
        return L
    def tile_max(self, m, acc=False):
        L = []
        for q in range(6):
            x = S(0, q)
            if acc: L.append("v_max3_f32 v%d, v%d, v%d, v%d" % (m[q], m[q], x, x+1)); L.append("v_max_f32 v%d, v%d, v%d" % (m[q], m[q], x+2))
            else: L.append("v_max3_f32 v%d, v%d, v%d, v%d" % (m[q], x, x+1, x+2))
            L.append("v_max3_f32 v%d, v%d, v%d, v%d" % (m[q], m[q], x+3, x+4))
            L.append("v_max3_f32 v%d, v%d, v%d, v%d" % (m[q], m[q], x+5, x+6))
            L.append("v_max_f32 v%d, v%d, v%d" % (m[q], m[q], x+7))
        return L
    def first_max(self):
        m = [TMP + q for q in range(6)]
        return self.tile_max(m) + self.rowreduce(m, "v_max_f32", TMP+8)
    def apply_max(self):
        L = []
        for q in range(6):
            m = TMP + q
            L.append("v_sub_f32 v%d, 0, v%d" % (m, m))
            for r in range(4): L.append("v_mov_b32 v%d, v%d" % (CINIT + 4*q + r, m))
            for e in range(8): L.append("v_add_f32 v%d, v%d, v%d" % (S(0,q,e), S(0,q,e), m))
            if self.c.summ == 'add': L.append("v_mov_b32 v%d, 0" % (LSUM+q))
        return L
    def epilogue(self):
        c = self.c
        L = []
        ls = [LSUM + q for q in range(6)]
        if c.summ == 'add':
            L += self.rowreduce(ls, "v_add_f32", TMP+8)
        else:
            for q in range(6): L.append("v_accvgpr_read_b32 v%d, a%d" % (ls[q], ALS + 4*q))
        if c.redo:
            L.append("v_add_f32 v%d, v%d, v%d" % (TMP, ls[0], ls[1]))
            for q in range(2, 6): L.append("v_add_f32 v%d, v%d, v%d" % (TMP, TMP, ls[q]))
            L.append("s_mov_b32 s%d, 0x%x" % (sT0, f2u(2.0 ** c.thr)))
            L.append("v_cmp_nle_f32 vcc, v%d, s%d" % (TMP, sT0) if False else "v_cmp_nge_f32 vcc, s%d, v%d" % (sT0, TMP))
            L.append("s_lshl_b32 s%d, 1, s%d" % (sT0+1, sPH))
            L.append("s_nop 3")
            L.append("s_cmp_lg_u64 vcc, 0")
            L.append("s_cselect_b32 s%d, s%d, 0" % (sT0+1, sT0+1))
            L.append("s_or_b32 s%d, s%d, s%d" % (sFLAG, sFLAG, sT0+1))
        for q in range(6): L.append("v_rcp_f32 v%d, v%d" % (ls[q], ls[q]))
        WA = 16; RA = 24; TV = 32; PK = 96
        L += ["v_mbcnt_lo_u32_b32 v0, -1, 0", "v_mbcnt_hi_u32_b32 v0, -1, v0",
              "v_and_b32 v2, 15, v0", "v_lshrrev_b32 v3, 4, v0",
              "v_lshlrev_b32 v4, 1, v2", "v_xor_b32 v4, v4, v3", "v_lshlrev_b32 v4, 3, v4", "v_lshl_add_u32 v4, v2, 8, v4",
              "v_add_u32 v4, s%d, v4" % sQL]
        for dt in range(8): L.append("v_xor_b32 v%d, 0x%x, v4" % (WA + dt, dt*32))
        L += ["v_xor_b32 v4, v2, v3", "v_lshlrev_b32 v4, 4, v4", "v_lshl_add_u32 v4, v3, 8, v4", "v_add_u32 v4, s%d, v4" % sQL]
        for k in range(4): L.append("v_xor_b32 v%d, 0x%x, v4" % (RA + k, k*64))
        def drain(qt):
            r = []
            buf = PK + 16*(qt & 1) - 16 if False else None
            return r
        RB = [64, 80]
        for qt in range(7):
            if qt < 6:
                half = 4096*(qt & 1)
                for dt in range(8):
                    tv = TV + (dt % 4)*6
                    x = O(qt, dt)
                    for i in range(4): L.append("v_accvgpr_read_b32 v%d, a%d" % (tv+i, x+i))
                    if dt == 2 and qt > 0:
                        L.append("s_waitcnt lgkmcnt(2)")
                        for k in range(4):
                            L.append("ds_read_b128 %s, v%d offset:%d" % (vr(RB[(qt-1) & 1] + 4*k, 4), RA + k, 4096*((qt-1) & 1) + 1024*k))
                    for i in range(4): L.append("v_mul_f32 v%d, v%d, v%d" % (tv+i, tv+i, ls[qt]))
                    L.append("v_cvt_pk_bf16_f32 v%d, v%d, v%d" % (tv+4, tv+0, tv+1))
                    L.append("v_cvt_pk_bf16_f32 v%d, v%d, v%d" % (tv+5, tv+2, tv+3))
                    L.append("ds_write_b64 v%d, %s offset:%d" % (WA + dt, vr(tv+4, 2), half))
                    if dt == 5 and qt > 0:
                        L.append("s_waitcnt lgkmcnt(4)")
                        L.append("s_add_u32 s%d, s%d, 0x%x" % (sT0, sPO, (qt-1)*4096))
                        for k in range(4):
                            L.append("buffer_store_dwordx4 %s, v%d, %s, s%d offen offset:%d%s" % (vr(RB[(qt-1) & 1] + 4*k, 4), VOOFF, sr(sO,4), sT0, 1024*k, (" " + c.nto) if isinstance(c.nto, str) else (" nt" if c.nto else "")))
            else:
                L.append("s_waitcnt lgkmcnt(0)")
                for k in range(4):
                    L.append("ds_read_b128 %s, v%d offset:%d" % (vr(RB[(qt-1) & 1] + 4*k, 4), RA + k, 4096*((qt-1) & 1) + 1024*k))
                L.append("s_add_u32 s%d, s%d, 0x%x" % (sT0, sPO, (qt-1)*4096))
                for k in range(4):
                    L.append("s_waitcnt lgkmcnt(%d)" % (3 - k))
                    L.append("buffer_store_dwordx4 %s, v%d, %s, s%d offen offset:%d%s" % (vr(RB[(qt-1) & 1] + 4*k, 4), VOOFF, sr(sO,4), sT0, 1024*k, (" " + c.nto) if isinstance(c.nto, str) else (" nt" if c.nto else "")))
        return L

    def stamp(self):
        if not self.c.stamp: return []
        return ["s_memtime s[92:93]", "s_memrealtime s[94:95]", "s_waitcnt lgkmcnt(0)",
                "s_mov_b32 s90, m0", "s_mov_b32 m0, s91", "s_nop 0", "v_writelane_b32 v%d, s92, m0" % STV, "v_writelane_b32 v%d, s94, m0" % (STV+1), "s_mov_b32 m0, s90", "s_add_u32 s91, s91, 1"]
    def stamp_out(self):
        L = self.stamp() + ["s_waitcnt lgkmcnt(0) vmcnt(0)"] + self.stamp()
        L += ["s_lshl_b32 s30, s2, 2", "s_add_u32 s30, s30, s%d" % sW, "s_lshl_b32 s30, s30, 9",
              "s_mov_b32 s68, s60", "s_mov_b32 s69, s61", "s_mov_b32 s70, 0x100000", "s_mov_b32 s71, 0x20000",
              "v_mbcnt_lo_u32_b32 v1, -1, 0", "v_mbcnt_hi_u32_b32 v1, -1, v1", "v_lshlrev_b32 v1, 2, v1",
              "s_getreg_b32 s31, hwreg(HW_REG_XCC_ID)", "v_writelane_b32 v%d, s31, 63" % STV, "v_writelane_b32 v%d, s91, 63" % (STV+1),
              "buffer_store_dword v%d, v1, s[68:71], s30 offen" % STV,
              "buffer_store_dword v%d, v1, s[68:71], s30 offen offset:256" % (STV+1)]
        return L

    def prepass(self, hh):
        c = self.c
        m = [LSUM + q for q in range(6)]
        L = []
        for q in range(6): L.append("v_mov_b32 v%d, 0xff800000" % m[q])
        L += ["s_lshl_b32 s%d, s%d, 18" % (sT2, sHH), "s_mov_b32 s%d, 0" % (sT2+1)]
        for s in range(4): L.append("v_add_u32 v%d, 0x%x, v%d" % (TMP+s, XREG, KADDR+s))
        L.append("L_pp:")
        body = []
        body += [self.m0set(XREG), "s_nop 0",
                 "buffer_load_dwordx4 v%d, %s, s%d offen lds" % (VDOFF, sr(sA,4), sT2),
                 "buffer_load_dwordx4 v%d, %s, s%d offen offset:2048 lds" % (VDOFF, sr(sA,4), sT2),
                 "s_waitcnt vmcnt(0)", "s_barrier"]
        for j in range(8):
            kt, s = j >> 2, j & 3
            body.append("ds_read_b128 %s, v%d offset:%d" % (ar(frag(j),4), TMP+s, 4096*kt))
        body.append("s_waitcnt lgkmcnt(0)")
        for j in range(8):
            body += self.g_mfmas(self.g_qk(0, j >> 2, j & 3, raw=True), j)
        body += ["s_nop 7", "s_barrier"]
        body += self.tile_max(m, acc=True)
        body += ["s_add_u32 s%d, s%d, 0x2000" % (sT2, sT2), "s_add_u32 s%d, s%d, 1" % (sT2+1, sT2+1), "s_cmp_lt_u32 s%d, 32" % (sT2+1), "s_cbranch_scc1 L_pp"]
        L += body
        L += self.rowreduce(m, "v_max_f32", TMP+8)
        return L

    def head_compute_start(self, hh, redo=False):
        c = self.c
        A = []
        g0 = [self.g_qk(0, j >> 2, j & 3, raw=True) for j in range(8)]
        A += self.simple_phase(g0, 8, [])
        A += ["s_nop 7"]
        fm = self.first_max()
        if c.redo:
            A += ["s_cmp_eq_u32 s%d, 0" % sMODE, "s_cbranch_scc1 L_fm"]
            alt = ["v_mov_b32 v%d, v%d" % (TMP+q, LSUM+q) for q in range(6)]
            self._alt = alt
            A += ["@ALT@"] + alt + ["s_branch L_fm2", "@END@", "L_fm:"] + fm + ["L_fm2:"]
        else:
            A += fm
        A += self.apply_max()
        g1 = [self.g_qk(1, j >> 2, j & 3) for j in range(8)]
        sal = {}; mem = {}
        it0 = [self.g_pv(0, dt) for dt in range(8)] + [self.g_qk(2, j >> 2, j & 3) for j in range(8)]
        N = 96 if c.summ == 'add' else 102
        pre = [(j, t) for (g, j, t) in self.steady_reads(it0, N) if g < 0]
        gb = 24
        if not c.nodma: put(sal, gb, [self.vmwait("pro", ["V%d_0" % hh, "K%d_2" % hh])])
        if not c.nobar: put(sal, gb, ["s_barrier"])
        gprev = gb
        for i, (j, t) in enumerate(pre):
            g = max(gprev + 2, 6*j + 7) | 1
            put(mem, g, [t]); gprev = g - 1 if False else g
        assert max(mem) < 48, mem
        if not c.nodma:
            su, dm, po = self.dpieces(-1, hh)[0]; put(sal, gb + 1, su); put(mem, gb + 4, [dm])
            su, dm, po = self.dpieces(-1, hh)[1]; put(mem, gb + 8, [dm]); put(sal, gb + 9, po)
        sm = self.sm_linear(0)
        A += self.simple_phase(g1, 8, sm, sal=sal, mem_extra=mem)
        A.append("s_waitcnt lgkmcnt(%d)" % max(0, len(pre) - 2))
        A.append("s_nop 0")
        return A

    def tail(self, hh):
        c = self.c
        L = []
        groups = [self.g_pv(30, dt) for dt in range(8)]
        full = groups + [self.g_qk(32, j >> 2, j & 3) for j in range(8)]
        mf, start = self.layout(groups)
        NP = len(mf)
        N = 96 if c.summ == 'add' else 102
        sal, mem, val = {}, {}, {}
        order = [x for x in self.steady_reads(full, N) if x[1] < 8]
        for (g, j, t) in order:
            if g >= 0: put(mem, g, [t])
        for j in range(1, 8):
            wg = start[j] - 1
            last = max(g for (g, jj, t) in order if jj == j)
            cnt = sum(1 for (g, jj, t) in order if last < g < wg)
            put(sal, wg, ["s_waitcnt lgkmcnt(%d)" % cnt])
        if not c.nodma:
            for i in (2, 3):
                su, dm, po = self.dpieces(29, hh)[i]
                gg = 7 + 8*(i-2)
                put(sal, gg - 1, su); mem[gg] = [dm] + mem.get(gg, []); put(sal, gg + 1, po)
        l1, l2 = self.pace_softmax(1, NP, mem, val, 0, 24)
        L += self.assemble(mf, sal, mem, val) + l1 + l2
        if not c.nodma: L.append(self.vmwait("t30", ["V%d_31" % hh]))
        if not c.nobar: L.append("s_barrier")
        g31 = [self.g_pv(31, dt) for dt in range(8)]
        for j in range(4): L += self.g_reads(g31[j], j)
        if not c.nodma:
            for su, dm, po in self.dpieces(30, hh): L += su + (["s_nop 0"] if su else []) + [dm] + po
        L += self.sm_linear(1, 24, 48)
        L.append("s_waitcnt lgkmcnt(6)")
        mf, start = self.layout(g31)
        sal, mem = {}, {}
        for j, g in enumerate(g31):
            if j + 4 < 8:
                rd = self.g_reads(g31[j+4], j+4)
                put(mem, start[j] + 1, [rd[0]]); put(mem, start[j] + 3, [rd[1]])
            if j + 1 < 8:
                put(sal, start[j+1] - 1, ["s_waitcnt lgkmcnt(%d)" % (2*(min(j + 4, 7) - (j + 1)))])
        L += self.assemble(mf, sal, mem, {})
        return L

    def xq_block(self, hh):
        c = self.c
        L = []
        if c.nodma: return L
        for w in range(4):
            L.append("s_add_u32 s%d, s%d, 0x%x" % (sT0, sQN, 3*w*8192))
            L += self.tile(sQ, sT0, XREG + w*8192, "Q%d_%d" % (hh+1, 3*w), nt=c.ntq)
        return L
    def qswitch(self, which):
        r, so, sv, z0, inc = (sB, sTB, sSB, 1, sIB) if which == 'B' else (sA, sTA, sSA, 2, sIA)
        lab = "L_nosw" + which
        return ["s_cmp_lg_u32 s%d, 3" % sLOOP, "s_cbranch_scc1 %s" % lab,
                "s_mov_b32 s%d, s%d" % (sv, so),
                "s_mov_b32 s%d, s%d" % (r, sQ), "s_mov_b32 s%d, s%d" % (r+1, sQ+1), "s_mov_b32 s%d, 0x30000" % (r+2),
                "s_mov_b32 s%d, 0x6000" % inc,
                "s_add_u32 s%d, s%d, 0x%x" % (so, sQN, z0*8192), lab + ":"]

    def body_of_job(self, hh, emit):
        c = self.c
        out = []; tr = []
        def both(l): out.extend(l); tr.extend(l)
        hs = self.head_compute_start(hh)
        o = [t for t in hs if t not in ("@ALT@", "@END@")]
        t = []; skip = False
        for x in hs:
            if x == "@ALT@": skip = True; continue
            if x == "@END@": skip = False; continue
            if not skip: t.append(x)
        out += o; tr += t
        both(["s_add_u32 s%d, s%d, 0x18000" % (sQN, sQN)])
        both(self.stamp())
        both(self.xq_block(hh))
        both(self.iteration(0, hh, first=True))
        both(["s_mov_b32 s%d, 0" % sLOOP])
        out.append("L_loop:")
        for n in range(1, 30):
            txt = []
            if n % 8 == 3: txt += self.qswitch('B')
            if n % 8 == 4: txt += self.qswitch('A')
            txt += self.iteration(n, hh)
            if n % 2 == 1 and c.stampit: txt += self.stamp()
            if n % 8 == 5: txt += ["s_cmp_eq_u32 s%d, 3" % sLOOP, "s_cbranch_scc1 L_tail"]
            if n % 8 == 0: txt += ["s_add_u32 s%d, s%d, 1" % (sLOOP, sLOOP), "s_branch L_loop"]
            if n <= 8: out += txt
            tr += txt
        out.append("L_tail:")
        both(self.stamp())
        both(self.tail(hh))
        both(self.stamp())
        return out, tr

    def generate(self):
        c = self.c
        hdr = ["; Attention forward softmax(Q K^T / sqrt(d)) V for gfx950, hand-scheduled (emitted by my own generator script).",
               "; One workgroup = 4 waves x 96 query rows = one head at a time, two heads per workgroup, 16x16x32 bf16 MFMA.",
               "; @launch grid=(256,1,1) block=(256,1,1) lds=163840",
               '.amdgcn_target "amdgcn-amd-amdhsa--gfx950"', ".text", ".globl %s" % KN, ".p2align 8",
               ".type %s,@function" % KN, "%s:" % KN]
        out = list(hdr); tr = []
        def both(l): out.extend(l); tr.extend(l)
        both(self.setup())
        both(self.stamp())
        out.append("L_cold:")
        both(self.cold_dma(0))
        if c.redo:
            out += ["s_cmp_lg_u32 s%d, 0" % sMODE, "s_cbranch_scc1 L_head"]
        both(self.setup2())
        out.append("L_head:")
        out += self.q_consume(0, True, static=True)
        tr += self.q_consume(0, True)
        epi = self.epilogue()
        out += ["s_cmp_eq_u32 s%d, 0" % sPEND, "s_cbranch_scc1 L_noepi", "L_epi:", "s_nop 7"] + epi + self.stamp() + ["s_cmp_lg_u32 s%d, 0" % sFIN, "s_cbranch_scc1 L_fin", "L_noepi:"]
        if c.redo:
            out += ["s_cmp_eq_u32 s%d, 0" % sMODE, "s_cbranch_scc1 L_nopp"] + self.prepass(0) + ["L_nopp:"]
        both(self.stamp())
        o, t = self.body_of_job(0, True)
        out += o; tr += t
        nxt = ["s_mov_b32 s%d, 1" % sPEND, "s_mov_b32 s%d, s%d" % (sPO, sQO), "s_mov_b32 s%d, s%d" % (sPH, sHH),
               "s_add_u32 s%d, s%d, s%d" % (sT0, sHH, sMODE),
               "s_cmp_eq_u32 s%d, 0" % sT0, "s_cbranch_scc0 L_lastjob",
               "s_mov_b32 s%d, 1" % sHH, "s_add_u32 s%d, s%d, 0x18000" % (sQO, sQO), "s_branch L_head",
               "L_lastjob:", "s_mov_b32 s%d, 1" % sFIN, "s_branch L_epi"]
        out += nxt
        tr += self.q_consume(1, False) + ["s_nop 7"] + epi + self.stamp() + self.stamp()
        o, t = self.body_of_job(1, False)
        tr += t + ["s_nop 7"] + epi
        out.append("L_fin:")
        if c.redo:
            out += ["s_cmp_lg_u32 s%d, 0" % sMODE, "s_cbranch_scc1 L_pick",
                    "s_lshl_b32 s%d, s%d, 2" % (sT0, sW), "v_mov_b32 v1, s%d" % sT0, "v_mov_b32 v2, s%d" % sFLAG,
                    "ds_write_b32 v1, v2", "s_waitcnt lgkmcnt(0)", "s_barrier",
                    "v_mov_b32 v1, 0", "ds_read_b128 v[4:7], v1", "s_waitcnt lgkmcnt(0)",
                    "v_or_b32 v4, v4, v5", "v_or_b32 v6, v6, v7", "v_or_b32 v4, v4, v6", "s_nop 1",
                    "v_readfirstlane_b32 s%d, v4" % sFLAG, "s_nop 3",
                    "L_pick:",
                    "s_and_b32 s%d, s%d, 3" % (sFLAG, sFLAG),
                    "s_cmp_eq_u32 s%d, 0" % sFLAG, "s_cbranch_scc1 L_done",
                    "s_ff1_i32_b32 s%d, s%d" % (sHH, sFLAG), "s_bitset0_b32 s%d, s%d" % (sFLAG, sHH),
                    "s_mov_b32 s%d, 1" % sMODE,
                    "s_waitcnt vmcnt(0) lgkmcnt(0)", "s_barrier", "s_branch L_cold", "L_done:"]
        if c.stamp: out += self.stamp_out()
        out += ["L_end:", "s_endpgm"]
        out += [".section .rodata,\"a\"", ".p2align 6", ".amdhsa_kernel %s" % KN,
                "  .amdhsa_next_free_vgpr 512", "  .amdhsa_next_free_sgpr 96", "  .amdhsa_accum_offset 256",
                "  .amdhsa_group_segment_fixed_size 0", "  .amdhsa_kernarg_size 48", "  .amdhsa_user_sgpr_count 2",
                "  .amdhsa_user_sgpr_kernarg_segment_ptr 1", "  .amdhsa_system_sgpr_workgroup_id_x 1",
                "  .amdhsa_float_denorm_mode_32 3", ".end_amdhsa_kernel"]
        self.out = out; self.trace = tr
        self.resolve()
        return "\n".join(self.out) + "\n"

    def resolve(self):
        q = []; best = {}; done = -1
        for t in self.trace:
            s = t.split(';')[0].strip()
            if s.startswith('buffer_') or s.startswith('global_'):
                m = re.search(r'tag=(\S+)', t)
                q.append(m.group(1) if m else None)
            m = re.search(r'vmcnt\(@(\w+)\).*need=(\S+)', t)
            if m:
                wid, needs = m.group(1), m.group(2).split(',')
                last = -1
                for nd in needs:
                    idx = [i for i, x in enumerate(q) if x == nd]
                    assert len(idx) == 2, (wid, nd, idx)
                    last = max(last, idx[-1])
                best.setdefault(wid, 63)
                if last > done:
                    best[wid] = min(best[wid], len(q) - 1 - last)
                    done = last
            else:
                m = re.search(r'vmcnt\((\d+)\)', s)
                if m: done = max(done, len(q) - 1 - int(m.group(1)))
        self.vm = best
        fix = lambda t: re.sub(r'vmcnt\(@(\w+)\)', lambda m: "vmcnt(%d)" % min(63, best[m.group(1)]), t)
        for t in self.out:
            m = re.search(r'vmcnt\(@(\w+)\)', t)
            if m: assert m.group(1) in best, m.group(1)
        self.out = [fix(t) for t in self.out]
        self.trace = [fix(t) for t in self.trace if not t.endswith(':')]

def main():
    ap = argparse.ArgumentParser()
    ap.add_argument('-o', default='k.s')
    ap.add_argument('opts', nargs='*')
    a = ap.parse_args()
    c = Cfg()
    for o in a.opts:
        k, _, v = o.partition('=')
        if v == '': v = True
        else:
            try: v = eval(v)
            except Exception: pass
        assert hasattr(c, k), k
        setattr(c, k, v)
    g = G(c)
    txt = g.generate()
    errs = check(g.trace)
    for e in errs[:40]: print("HAZ:", e)
    print("%s: %d lines, %d hazards, vm=%s" % (a.o, len(g.out), len(errs), g.vm))
    open(a.o, 'w').write(txt)
if __name__ == "__main__": main()
```

```python
import re
TRANS = ("v_exp_f32","v_log_f32","v_rcp_f32","v_rsq_f32","v_sqrt_f32","v_sin_f32","v_cos_f32")
def expand(op):
    op = op.strip()
    neg = op.lstrip('-')
    if neg.startswith('abs('): neg = neg[4:-1]
    if neg.startswith('|'): neg = neg.strip('|')
    m = re.fullmatch(r'([vas])\[(\d+):(\d+)\]', neg)
    if m: return [m.group(1)+str(i) for i in range(int(m.group(2)), int(m.group(3))+1)]
    m = re.fullmatch(r'([vas])(\d+)', neg)
    if m: return [neg]
    if neg in ('vcc','m0','exec','scc'): return [neg]
    if neg in ('vcc_lo','vcc_hi'): return ['vcc']
    return []
class Ins:
    def __init__(s, text):
        s.text = text
        t = text.split(';')[0].strip()
        s.label = t.endswith(':')
        s.r = []; s.w = []; s.kind = 'other'; s.ws = 1
        if not t or s.label or t.startswith('.'):
            s.kind = 'none'; s.ws = 0; return
        sp = t.split(None, 1)
        s.op = op = sp[0]
        for suf in ('_e32','_e64'):
            if op.endswith(suf): op = op[:-4]
        s.op = op
        rest = sp[1] if len(sp) > 1 else ''
        ops = [o.strip() for o in re.split(r',\s*(?![^\[]*\])', rest)] if rest else []
        if ops:
            last = ops[-1].split()
            s.mods = last[1:]
            ops[-1] = last[0] if last else ''
        else: s.mods = []
        s.ops = ops
        if op.startswith('v_mfma'):
            s.kind = 'mfma'; s.w = expand(ops[0]); s.A = expand(ops[1]); s.B = expand(ops[2]); s.C = expand(ops[3])
            s.r = s.A + s.B + s.C
            s.passes = 8 if '32x32' in op else 4
        elif op.startswith('ds_read'):
            s.kind = 'dsr'; s.w = expand(ops[0]); s.r = expand(ops[1])
        elif op.startswith('ds_write'):
            s.kind = 'dsw'; s.r = sum((expand(o) for o in ops), [])
        elif op.startswith('ds_'):
            s.kind = 'dsr'; s.w = expand(ops[0]); s.r = sum((expand(o) for o in ops[1:]), [])
        elif op.startswith('buffer_load'):
            if 'lds' in s.mods:
                s.kind = 'dma'; s.r = sum((expand(o) for o in ops), []) + ['m0']
            else:
                s.kind = 'vld'; s.w = expand(ops[0]); s.r = sum((expand(o) for o in ops[1:]), [])
        elif op.startswith('buffer_store') or op.startswith('global_store'):
            s.kind = 'vst'; s.r = sum((expand(o) for o in ops), [])
            s.data = expand(ops[0]) if op.startswith('buffer') else expand(ops[1])
            s.wide = op.endswith('x4') or op.endswith('x3')
        elif op.startswith('global_load'):
            s.kind = 'vld'; s.w = expand(ops[0]); s.r = sum((expand(o) for o in ops[1:]), [])
        elif op == 's_waitcnt':
            s.kind = 'wait'; s.vm = None; s.lgkm = None
            m = re.search(r'vmcnt\((\d+)\)', t); s.vm = int(m.group(1)) if m else None
            m = re.search(r'lgkmcnt\((\d+)\)', t); s.lgkm = int(m.group(1)) if m else None
        elif op == 's_nop':
            s.kind = 'nop'; s.ws = int(ops[0], 0) + 1
        elif op.startswith('s_load') or op in ('s_memtime','s_memrealtime'):
            s.kind = 'smem'; s.w = expand(ops[0]); s.r = sum((expand(o) for o in ops[1:]), [])
        elif op.startswith('s_'):
            s.kind = 'salu'
            if op.startswith('s_cmp') : s.r = sum((expand(o) for o in ops), []); s.w=['scc']
            elif op.startswith('s_cbranch') or op in ('s_branch','s_barrier','s_endpgm','s_setprio','s_sleep'): pass
            else:
                s.w = expand(ops[0]) if ops else []; s.r = sum((expand(o) for o in ops[1:]), [])
        elif op.startswith('v_'):
            s.kind = 'valu'
            s.trans = op in TRANS
            if op.startswith('v_cmp'):
                s.w = expand(ops[0]); s.r = sum((expand(o) for o in ops[1:]), [])
            elif op.startswith('v_permlane'):
                s.w = expand(ops[0]) + expand(ops[1]); s.r = list(s.w)
            elif op.startswith('v_fmac') or op.startswith('v_dot2c'):
                s.w = expand(ops[0]); s.r = sum((expand(o) for o in ops), [])
            elif op.startswith('v_readfirstlane') or op.startswith('v_readlane'):
                s.w = expand(ops[0]); s.r = sum((expand(o) for o in ops[1:]), [])
            elif op.startswith('v_add_co') or op.startswith('v_addc_co') or op.startswith('v_sub_co'):
                s.w = expand(ops[0]) + expand(ops[1]); s.r = sum((expand(o) for o in ops[2:]), [])
            else:
                s.w = expand(ops[0]); s.r = sum((expand(o) for o in ops[1:]), [])
def check(lines, verbose=True):
    ins = [Ins(l) for l in lines]
    errs = []
    pos = 0
    last_valu_w = {}
    last_trans_w = {}
    last_mfma_w = {}
    last_mfma_c = {}
    last_valu_sw = {}
    last_store = {}
    last_m0 = -100
    lgkm = []
    vm = []
    pend = {}
    def err(i, msg):
        errs.append("%s  @[%d] %s" % (msg, i, ins[i].text.strip()))
    for i, x in enumerate(ins):
        if x.kind == 'none': continue
        if x.kind != 'wait':
            for r in set(x.r + x.w):
                if r in pend:
                    err(i, "use of %s before %s wait" % (r, pend[r]))
        d = lambda p: pos - p - 1
        if x.kind == 'mfma':
            for r in x.r:
                if r in last_valu_w and d(last_valu_w[r]) < 2: err(i, "VALU->MFMA %s dist %d" % (r, d(last_valu_w[r])))
            for r in x.A + x.B:
                if r in last_mfma_w and d(last_mfma_w[r][0]) < last_mfma_w[r][1].passes + 4: err(i, "MFMA D->A/B %s" % r)
            for r in x.C:
                if r in last_mfma_w:
                    p, y = last_mfma_w[r]
                    if y.w != x.C and d(p) < y.passes + 2: err(i, "MFMA D->C overlap %s" % r)
            for r in x.w:
                if r in last_mfma_w:
                    p, y = last_mfma_w[r]
                    if y.w != x.w or x.C != x.w:
                        if d(p) < y.passes + 2: err(i, "MFMA WAW %s dist %d" % (r, d(p)))
        elif x.kind in ('valu',):
            for r in set(x.r + x.w):
                if r in last_mfma_w:
                    p, y = last_mfma_w[r]
                    if d(p) < y.passes + 4: err(i, "MFMA D->VALU %s dist %d" % (r, d(p)))
            for r in x.w:
                if r in last_mfma_c:
                    p, y = last_mfma_c[r]
                    if d(p) < y.passes - 1: err(i, "MFMA SrcC WAR %s dist %d" % (r, d(p)))
                if r in last_store and d(last_store[r]) < 2: err(i, "store data WAR %s" % r)
            if not x.trans:
                for r in x.r:
                    if r in last_trans_w and d(last_trans_w[r]) < 1: err(i, "trans->use %s" % r)
            if x.op.startswith('v_permlane'):
                for r in x.r:
                    if r in last_valu_w and d(last_valu_w[r]) < 2: err(i, "VALU->permlane %s" % r)
            if x.op.startswith('v_readfirstlane') or x.op.startswith('v_readlane'):
                for r in x.r:
                    if r in last_valu_w and d(last_valu_w[r]) < 1: err(i, "VALU->readlane %s" % r)
            for r in x.r:
                if r in last_valu_sw and d(last_valu_sw[r]) < 2: err(i, "VALU sgpr/vcc ->VALU read %s" % r)
            if 'dpp' in x.text or 'row_' in x.text:
                for r in x.r:
                    if r in last_valu_w and d(last_valu_w[r]) < 2: err(i, "VALU->DPP %s" % r)
        elif x.kind in ('dsr','dsw','vld','vst','dma'):
            for r in set(x.r + x.w):
                if r in last_mfma_w:
                    p, y = last_mfma_w[r]
                    if d(p) < y.passes + 4: err(i, "MFMA D->mem %s dist %d" % (r, d(p)))
            if x.kind in ('vld','vst','dma'):
                for r in x.r:
                    if r in last_valu_sw and d(last_valu_sw[r]) < 5: err(i, "VALU sgpr->VMEM %s" % r)
            if x.kind == 'dma' and d(last_m0) < 1: err(i, "M0->DMA")
        elif x.kind == 'salu':
            for r in x.r:
                if r in last_valu_sw and d(last_valu_sw[r]) < 1 and r != 'vcc': pass
        if x.kind == 'wait':
            if x.lgkm is not None:
                while len(lgkm) > x.lgkm:
                    y = lgkm.pop(0)
                    for r in y:
                        if pend.get(r) == 'lgkm': del pend[r]
            if x.vm is not None:
                while len(vm) > x.vm:
                    y = vm.pop(0)
                    for r in y:
                        if pend.get(r) == 'vm': del pend[r]
        elif x.kind in ('dsr','dsw'):
            lgkm.append(x.w)
            for r in x.w: pend[r] = 'lgkm'
            if len(lgkm) > 15: err(i, "lgkmcnt overflow (%d outstanding)" % len(lgkm))
        elif x.kind == 'smem':
            lgkm.append(x.w); lgkm.append([])
            for r in x.w: pend[r] = 'lgkm'
        elif x.kind in ('vld','vst','dma'):
            vm.append(x.w)
            for r in x.w: pend[r] = 'vm'
            if len(vm) > 63: err(i, "vmcnt overflow (%d outstanding)" % len(vm))
        if x.kind == 'valu':
            for r in x.w:
                if r[0] in 'va' and r != 'vcc': last_valu_w[r] = pos
                else: last_valu_sw[r] = pos
                last_trans_w.pop(r, None); last_mfma_w.pop(r, None)
            if x.trans:
                for r in x.w: last_trans_w[r] = pos
        elif x.kind == 'mfma':
            for r in x.w: last_mfma_w[r] = (pos, x); last_valu_w.pop(r, None)
            for r in x.C: last_mfma_c[r] = (pos, x)
        elif x.kind == 'vst' and x.wide:
            for r in x.data: last_store[r] = pos
        elif x.kind == 'salu':
            if 'm0' in x.w: last_m0 = pos
            for r in x.w: last_valu_sw.pop(r, None)
        elif x.kind in ('dsr','vld'):
            for r in x.w: last_valu_w.pop(r, None); last_mfma_w.pop(r, None)
        pos += x.ws
    return errs

def check_softmax_flow(lines, lo=16, hi=112, lsum=(246, 252)):
    errs = []
    st = {}
    added = {}
    inr = lambda r: r[0] == 'v' and r[1:].isdigit() and lo <= int(r[1:]) < hi
    nexp = nadd = ncvt = 0
    for i, l in enumerate(lines):
        x = Ins(l)
        if x.kind == 'none': continue
        def err(m): errs.append("%s @[%d] %s" % (m, i, l.strip()))
        if x.kind == 'mfma':
            if all(inr(r) for r in x.B):
                for r in x.B:
                    if st.get(r) != 'P': err("PV reads %s in state %s" % (r, st.get(r)))
            if all(inr(r) for r in x.w):
                first = x.C != x.w
                for r in x.w:
                    if first:
                        if st.get(r) == 'E' and not added.get(r): err("QK overwrites un-added %s" % r)
                    elif st.get(r) != 'S': err("QK accumulates into %s in state %s" % (r, st.get(r)))
                    st[r] = 'S'
        elif x.kind == 'valu':
            if x.op == 'v_exp_f32' and inr(x.w[0]):
                if st.get(x.r[0]) != 'S': err("exp of %s in state %s" % (x.r[0], st.get(x.r[0])))
                st[x.w[0]] = 'E'; added[x.w[0]] = False; nexp += 1
            elif x.op == 'v_add_f32' and x.w[0][1:].isdigit() and lsum[0] <= int(x.w[0][1:]) < lsum[1] and len(x.r) == 2 and inr(x.r[1]):
                r = x.r[1]
                if st.get(r) != 'E' or added.get(r): err("add of %s state %s added %s" % (r, st.get(r), added.get(r)))
                added[r] = True; nadd += 1
            elif x.op == 'v_cvt_pk_bf16_f32' and inr(x.w[0]) and all(inr(r) for r in x.r) and st.get(x.r[0]) == 'E':
                for r in x.r:
                    if st.get(r) != 'E': err("cvt of %s in state %s" % (r, st.get(r)))
                d = x.w[0]
                if st.get(d) == 'E' and d not in x.r and not added.get(d): err("cvt overwrites un-added %s" % d)
                if d in x.r and not added.get(d): err("cvt overwrites un-added %s" % d)
                st[d] = 'P'; ncvt += 1
            else:
                for r in x.w:
                    if inr(r):
                        if x.op == 'v_add_f32' and st.get(r) == 'S' and r in x.r: continue
                        st[r] = 'T'
        else:
            for r in x.w:
                if inr(r): st[r] = 'T'
    return errs, (nexp, nadd, ncvt)
```

```python
import sys, argparse, struct, re
from asmcheck import check, check_softmax_flow

KN = "standalone__gqa_softmax__near_ridge_kernel"
LOG2E = 1.4426950408889634
CS = LOG2E * (128 ** -0.5)
def f2u(f): return struct.unpack('<I', struct.pack('<f', f))[0]

class Cfg:
    stamp = False
    nt = True
    ntq = True
    nto = "sc1 nt"
    nodma = False
    nobar = False
    redo = True
    thr = 32
    stampit = True
    stampq = False
    bargap = 64
    vgaps = (65, 69, 73, 77, 81, 85, 89, 93, 97, 101, 105, 109, 113, 117, 121, 125)
    kgaps = (31, 33, 37, 41, 45, 49, 53, 57)
    dmagaps = (67, 75, 83, 91)
    qgap = 43
    dmacap = True

SBUF = [16, 64]
QH = 112
CINIT = 208
KADDR = 232
VADDR = 236
VDOFF = 244
VOOFF = 245
LSUM = 246
STV = 252
TMP = 0
AFRAG = 192
AFRAG2 = 224
def vr(a, n=1): return "v[%d:%d]" % (a, a+n-1) if n > 1 else "v%d" % a
def ar(a, n=1): return "a[%d:%d]" % (a, a+n-1) if n > 1 else "a%d" % a
def sr(a, n=1): return "s[%d:%d]" % (a, a+n-1) if n > 1 else "s%d" % a
def S(b, qt, e=0): return SBUF[b] + 8*qt + e
def O(qt, dt): return (qt*8 + dt)*4
def Qop(qt, s): return vr(QH + 16*qt + 4*s, 4)
def frag(j): return AFRAG + 4*(j % 8)
MF = "v_mfma_f32_16x16x32_bf16"

sK, sV, sQ, sO = 4, 8, 12, 16
sTK, sTV = 20, 21
sMW = 22
sQM = 23
sC = 24; sW = 25
sQO = 26
sPO = 27
sLOOP = 28
sQP = 29
sT0 = 30
sQN = 38
sHH = 39
sQL = 40
sFLAG = 43
sMODE = 44
sPH = 47
sT2 = 48
KRING, VRING, QREG = 0, 32768, 65536

def put(d, g, l): d.setdefault(g, []).extend(l)

class G:
    def __init__(self, cfg):
        self.c = cfg

    def kread(self, dst, kt, s, n):
        return ["ds_read_b128 %s, v%d offset:%d" % (ar(dst,4), KADDR+s, (n & 3)*8192 + 4096*kt)]
    def vread(self, dst, dt, n):
        return ["ds_read_b64_tr_b16 %s, v%d offset:%d" % (ar(dst,2), VADDR+dt, (n & 3)*8192),
                "ds_read_b64_tr_b16 %s, v%d offset:%d" % (ar(dst+2,2), VADDR+dt, (n & 3)*8192 + 4096)]
    def pv(self, n, dt, qt, f, first=False):
        acc = ar(O(qt, dt), 4)
        return "%s %s, %s, %s, %s" % (MF, acc, ar(f, 4), vr(S(n & 1, qt), 4), "0" if first else acc)
    def qk(self, n, kt, s, qt, f, raw=False):
        d = vr(S(n & 1, qt, 4*kt), 4)
        cc = ("0" if raw else vr(CINIT + 4*qt, 4)) if s == 0 else d
        return "%s %s, %s, %s, %s" % (MF, d, ar(f, 4), Qop(qt, s), cc)
    def exp_i(self, b, k): x = S(b, k // 8, k % 8); return "v_exp_f32 v%d, v%d" % (x, x)
    def ac_items(self, b):
        r = []
        for k in range(48):
            qt, e = k // 8, k % 8
            x = S(b, qt, e)
            r.append((k, "v_add_f32 v%d, v%d, v%d" % (LSUM+qt, LSUM+qt, x)))
            if e & 1: r.append((k, "v_cvt_pk_bf16_f32 v%d, v%d, v%d" % (S(b, qt, e >> 1), x-1, x)))
        return r
    def pace_softmax(self, b, mem, val, k0, k1, g0, g1, nocount=(), slack=None):
        ac = [x for x in self.ac_items(b) if k0 <= x[0] < k1]
        k = k0; i = 0; donegap = {}
        span = g1 - g0
        for g in range(g0, g1):
            used = sum(1 for t in mem.get(g, []) if not (g in nocount and 'lds ;' in t)) + len(val.get(g, []))
            cap = 2 - used
            tgt = g0 + ((k - k0) * span) // (k1 - k0) if k < k1 else None
            if k < k1 and tgt <= g and (cap == 2 or (slack is not None and g - tgt >= 2 and cap >= 1)):
                put(val, g, [self.exp_i(b, k)]); donegap[k] = g; k += 1
                continue
            while cap > 0 and i < len(ac) and ac[i][0] in donegap and donegap[ac[i][0]] < g:
                put(val, g, [ac[i][1]]); i += 1; cap -= 1
            if slack is not None:
                while i < len(ac) and ac[i][0] in donegap and g - donegap[ac[i][0]] > slack:
                    put(val, g, [ac[i][1]]); i += 1
        left = []
        while k < k1:
            left.append(self.exp_i(b, k)); donegap[k] = g1; k += 1
            while i < len(ac) and ac[i][0] <= k - 2:
                left.append(ac[i][1]); i += 1
        if left: left.append("s_nop 0")
        return left + [t for (_, t) in ac[i:]]

    def dma(self, srd, so, j, tag, nt=None):
        nt = self.c.nt if nt is None else nt
        return "buffer_load_dwordx4 v%d, %s, s%d offen%s%s lds ; tag=%s" % (VDOFF, sr(srd,4), so, " offset:2048" if j else "", " nt" if nt else "", tag)
    def m0set(self, ldsbase): return "s_add_u32 m0, s%d, 0x%x" % (sMW, ldsbase)
    def tile(self, srd, so, ldsbase, tag, inc=None, nt=None):
        return [([self.m0set(ldsbase)], self.dma(srd, so, 0, tag, nt), []),
                ([], self.dma(srd, so, 1, tag, nt), ["s_add_u32 s%d, s%d, %s" % (so, so, inc)] if inc else [])]
    def flat(self, pieces):
        r = []
        for su, dm, po in pieces: r += su + (["s_nop 0"] if su else []) + [dm] + po
        return r
    def ktile(self, m, hh): return self.tile(sK, sTK, KRING + (m & 3)*8192, "K%d_%d" % (hh + (m >= 32), m % 32), "0x2000")
    def vtile(self, m, hh): return self.tile(sV, sTV, VRING + (m & 3)*8192, "V%d_%d" % (hh + (m >= 32), m % 32), "0x2000")
    def dpieces(self, n, hh): return self.ktile(n + 6, hh) + self.vtile(n + 4, hh)
    def vmwait(self, wid, needs): return "s_waitcnt vmcnt(@%s) ; need=%s" % (wid, ",".join(needs))
    def weave(self, stream, pieces, first=2):
        if not pieces: return list(stream)
        step = max(1, len(stream) // len(pieces))
        o = []
        for i, (su, dm, po) in enumerate(pieces):
            seg = stream[i*step:(i+1)*step] if i < len(pieces) - 1 else stream[i*step:]
            o += su + seg[:first] + [dm] + po + seg[first:]
        return o

    def assemble(self, mf, sal, mem, val):
        L = []
        for g, m in enumerate(mf):
            L.append(m)
            L += sal.get(g, []); L += mem.get(g, []); L += val.get(g, [])
        return L

    def vsched(self, n):
        r = []
        for dt in range(8):
            for i, t in enumerate(self.vread(frag(dt), dt, n)): r.append((self.c.vgaps[2*dt+i] - 96, dt, t))
        return r
    def ksched(self, n):
        return [(self.c.kgaps[j], 8 + j, self.kread(frag(8+j), j >> 2, j & 3, n + 2)[0]) for j in range(8)]

    def waits(self, order, starts, sal, upto):
        for j, st in starts:
            wg = st - 1
            last = max(g for (g, jj, t) in order if jj == j)
            assert last < wg - 3, (j, last, wg)
            cnt = sum(1 for (g, jj, t) in order if last < g < wg)
            put(sal, wg, ["s_waitcnt lgkmcnt(%d)" % cnt])

    def qpiece(self, n, hh, sal, mem):
        c = self.c
        j = (n - 1) & 1
        g = c.qgap
        lab = "L_nq%d" % (n & 3)
        z = (n - 1) >> 1
        order = [0, 3, 6, 9, 1, 4, 7, 10, 2, 5, 8, 11]
        tag = "Q%d_%d" % (hh + 1, z) if n <= 24 else "none"
        dm = self.dma(sQ, sQN, j, tag, c.ntq)
        blk = ["s_cmp_eq_u32 s%d, 0" % sQP, "s_cbranch_scc1 %s" % lab, "s_mov_b32 m0, s%d" % sQM, "s_nop 0", dm]
        if j == 1: blk += ["s_add_u32 s%d, s%d, 0x2000" % (sQN, sQN), "s_add_u32 s%d, s%d, 0x2000" % (sQM, sQM), "s_sub_u32 s%d, s%d, 1" % (sQP, sQP)]
        blk += [lab + ":"]
        return blk, (n <= 24)

    def iteration(self, n, hh, first=False, static=True):
        c = self.c
        mf = []
        for dt in range(8):
            for qt in range(6): mf.append(self.pv(n, dt, qt, frag(dt), first))
        for j in range(8):
            for qt in range(6): mf.append(self.qk(n + 2, j >> 2, j & 3, qt, frag(8 + j)))
        sal, mem, val = {}, {}, {}
        order = self.vsched(n) + self.ksched(n) + [(g + 96, j + 16, t) for (g, j, t) in self.vsched(n + 1)]
        order.sort(key=lambda x: x[0])
        for (g, j, t) in order:
            if 0 <= g < 96: put(mem, g, [t])
        self.waits(order, [(j, 6*j) for j in range(1, 17)], sal, 96)
        b = ["s_waitcnt lgkmcnt(0)"]
        if not c.nodma: b = [self.vmwait("it%d" % (n % 4 if not first else 100), ["V%d_%d" % (hh + ((n+1) >= 32), (n+1) % 32), "K%d_%d" % (hh + ((n+3) >= 32), (n+3) % 32)]).replace("s_waitcnt ", "s_waitcnt lgkmcnt(0) ")]
        if not c.nobar: b.append("s_barrier")
        put(sal, c.bargap, b)
        nocount = []
        if not c.nodma:
            for g, (su, dm, po) in zip(c.dmagaps, self.dpieces(n, hh)):
                put(sal, g - 1, su); mem[g] = [dm] + mem.get(g, []); put(sal, g + 1, po)
                if not c.dmacap: nocount.append(g)
            if not first:
                blk, live = self.qpiece(n, hh, sal, mem)
                if static or live:
                    if not static: blk = [t for t in blk if not t.endswith(':')]
                    put(sal, c.qgap, blk)
        left = self.pace_softmax((n+1) & 1, mem, val, 0, 48, 0, 96, nocount)
        return self.assemble(mf, sal, mem, val) + left

    def qk_phase(self, n, raw, valstream, sal=None, mem=None, D=3):
        sal = dict(sal or {}); mem = dict(mem or {})
        L = []
        rd = [self.kread(frag(8+j), j >> 2, j & 3, n)[0] for j in range(8)]
        L += rd[:D] + ["s_waitcnt lgkmcnt(%d)" % (D - 1)]
        mf = []
        for j in range(8):
            for qt in range(6): mf.append(self.qk(n, j >> 2, j & 3, qt, frag(8+j), raw))
            if j + D < 8: put(mem, 6*j + 1, [rd[j + D]])
            if j + 1 < 8: put(sal, 6*j + 5, ["s_waitcnt lgkmcnt(%d)" % (min(j + D, 7) - (j + 1))])
        val = {}
        for i, t in enumerate(valstream): put(val, (i * 48) // max(1, len(valstream)), [t])
        return L + self.assemble(mf, sal, mem, val)

    def sm_linear(self, b, k0=0, k1=48, lag=2):
        ac = [x for x in self.ac_items(b) if k0 <= x[0] < k1]
        L = []; i = 0
        for k in range(k0, k1):
            L.append(self.exp_i(b, k))
            while i < len(ac) and ac[i][0] <= k - lag:
                L.append(ac[i][1]); i += 1
        L.append("s_nop 0")
        L += [t for (_, t) in ac[i:]]
        return L

    def setup(self):
        c = self.c
        L = []; e = L.append
        e("s_cmp_ge_u32 s2, 0x100")
        e("s_cbranch_scc1 L_end")
        e("s_load_dwordx4 s[52:55], s[0:1], 0")
        e("s_load_dwordx4 s[56:59], s[0:1], 16")
        if c.stamp:
            e("s_load_dwordx2 s[60:61], s[0:1], 40")
            e("s_mov_b32 s91, 0")
        e("v_lshrrev_b32 v1, 6, v0")
        e("v_and_b32 v0, 63, v0")
        e("v_readfirstlane_b32 s%d, v1" % sW)
        e("v_and_b32 v2, 15, v0")
        e("v_lshrrev_b32 v3, 4, v0")
        e("s_and_b32 s%d, s%d, 1" % (sT0, sW))
        e("s_lshr_b32 s%d, s%d, 1" % (sT0+1, sW))
        e("s_lshl_b32 s%d, s%d, 2" % (sT0+1, sT0+1))
        e("s_add_u32 s%d, s%d, s%d" % (sT0+1, sT0+1, sT0))
        e("s_lshl_b32 s%d, s%d, 10" % (sMW, sT0+1))
        e("s_lshl_b32 s%d, s%d, 2" % (sT0, sT0))
        e("v_add_u32 v6, s%d, v3" % sT0)
        e("v_lshlrev_b32 v6, 1, v6")
        e("v_xor_b32 v6, v6, v2")
        e("v_lshlrev_b32 v6, 4, v6")
        e("v_lshl_add_u32 v6, v3, 8, v6")
        e("v_add_u32 v%d, s%d, v6" % (VDOFF, sMW))
        e("s_mov_b32 s%d, 0x%x" % (sC, f2u(CS)))
        e("s_mov_b32 s%d, 0" % sFLAG)
        e("s_mov_b32 s%d, 0" % sMODE)
        e("s_mov_b32 s%d, 0" % sHH)
        e("s_mov_b32 s%d, 0x80000" % (sK+2)); e("s_mov_b32 s%d, 0x20000" % (sK+3))
        e("s_mov_b32 s%d, 0x80000" % (sV+2)); e("s_mov_b32 s%d, 0x20000" % (sV+3))
        e("s_mov_b32 s%d, 0x30000" % (sQ+2)); e("s_mov_b32 s%d, 0x20000" % (sQ+3))
        e("s_mov_b32 s%d, 0x30000" % (sO+2)); e("s_mov_b32 s%d, 0x20000" % (sO+3))
        e("s_lshl_b32 s%d, s2, 19" % sT0)
        e("s_mul_i32 s%d, s2, 0x30000" % (sT0+1))
        e("s_waitcnt lgkmcnt(0)")
        e("s_add_u32 s%d, s54, s%d" % (sK, sT0)); e("s_addc_u32 s%d, s55, 0" % (sK+1))
        e("s_add_u32 s%d, s52, s%d" % (sQ, sT0+1)); e("s_addc_u32 s%d, s53, 0" % (sQ+1))
        e("s_add_u32 s%d, s56, s%d" % (sV, sT0)); e("s_addc_u32 s%d, s57, 0" % (sV+1))
        e("s_add_u32 s%d, s58, s%d" % (sO, sT0+1)); e("s_addc_u32 s%d, s59, 0" % (sO+1))
        return L
    def setup2(self):
        L = []; e = L.append
        e("v_mbcnt_lo_u32_b32 v0, -1, 0"); e("v_mbcnt_hi_u32_b32 v0, -1, v0")
        e("v_and_b32 v2, 15, v0"); e("v_lshrrev_b32 v3, 4, v0")
        e("v_and_b32 v5, 7, v2")
        e("v_lshlrev_b32 v5, 1, v5")
        e("v_xor_b32 v5, v5, v3")
        e("v_lshlrev_b32 v5, 4, v5")
        e("v_lshl_add_u32 v5, v2, 8, v5")
        for s in range(4): e("v_xor_b32 v%d, 0x%x, v5" % (KADDR+s, s*64))
        e("v_bfe_u32 v6, v0, 2, 2")
        e("v_and_b32 v7, 3, v0")
        e("v_lshl_add_u32 v8, v3, 2, v6")
        e("v_and_b32 v9, 7, v8")
        e("v_lshlrev_b32 v8, 8, v8")
        e("v_lshl_add_u32 v8, v9, 5, v8")
        e("v_lshl_add_u32 v8, v7, 3, v8")
        e("v_add_u32 v8, 0x%x, v8" % VRING)
        for dt in range(8): e("v_xor_b32 v%d, 0x%x, v8" % (VADDR+dt, dt*32))
        e("v_lshlrev_b32 v%d, 4, v0" % VOOFF)
        e("s_mul_i32 s%d, s%d, 0x6000" % (sQL, sW))
        e("s_add_u32 s%d, s%d, 0x%x" % (sQL, sQL, QREG))
        return L
    def qtile(self, z, hh, so):
        return [(["s_add_u32 s%d, s%d, 0x%x" % (so, sQN, z*8192), self.m0set(QREG + z*8192)], self.dma(sQ, so, 0, "Q%d_%d" % (hh, z), self.c.ntq), []),
                ([], self.dma(sQ, so, 1, "Q%d_%d" % (hh, z), self.c.ntq), [])]
    def qreads(self, qt, t):
        return ["ds_read_b128 %s, v%d offset:%d" % (Qop(qt, s), t+s, (qt >> 1)*8192 + (qt & 1)*4096) for s in range(4)]
    def qaddr(self, t): return ["v_add_u32 v%d, s%d, v%d" % (t+s, sQL, KADDR+s) for s in range(4)]

    def cold_start(self, hh, static):
        c = self.c
        L = ["s_lshl_b32 s%d, s%d, 18" % (sTK, sHH), "s_mov_b32 s%d, s%d" % (sTV, sTK),
             "s_mul_i32 s%d, s%d, 0x18000" % (sQN, sHH),
             "s_mul_i32 s%d, s%d, 0x6000" % (sQO, sW), "s_add_u32 s%d, s%d, s%d" % (sQO, sQO, sQN)]
        Q = lambda zs: sum((self.qtile(z, hh, sT0) for z in zs), [])
        L += self.flat(self.ktile(0, hh) + Q([0, 3, 6, 9]) + Q([1, 4, 7, 10]))
        if c.stampq: L += self.stamp()
        if static: L += ["s_cmp_lg_u32 s%d, 0" % sMODE, "s_cbranch_scc1 L_nos2"]
        L += self.setup2()
        if static: L += ["L_nos2:"]
        L += self.qaddr(TMP)
        later = [Q([2, 5, 8, 11]), self.ktile(1, hh) + self.vtile(0, hh) + self.ktile(2, hh) + self.vtile(1, hh), self.ktile(3, hh)]
        for jj in range(3):
            L.append(self.vmwait("q%d" % jj, ["Q%d_%d" % (hh, 3*w + jj) for w in range(4)] + (["K%d_0" % hh] if jj == 0 else [])))
            L.append("s_barrier")
            if jj == 0 or c.stampq: L += self.stamp()
            L += self.qreads(2*jj, TMP) + self.qreads(2*jj+1, TMP)
            pc = later[jj]
            h = len(pc) // 2
            L += self.flat(pc[:2]) if False else []
            L.append("s_waitcnt lgkmcnt(4)")
            L += self.weave(self.prescale(2*jj), pc[:h])
            L.append("s_waitcnt lgkmcnt(0)")
            L += self.weave(self.prescale(2*jj+1), pc[h:])
        L += ["s_add_u32 s%d, s%d, 0x18000" % (sQN, sQN)]
        return L
    def prescale(self, qt):
        L = []
        for i in range(16):
            x = QH + 16*qt + i
            a = TMP + 4 + (i % 4)*2; b = a + 1
            L.append("v_lshlrev_b32 v%d, 16, v%d" % (a, x))
            L.append("v_and_b32 v%d, 0xffff0000, v%d" % (b, x))
            L.append("v_mul_f32 v%d, s%d, v%d" % (a, sC, a))
            L.append("v_mul_f32 v%d, s%d, v%d" % (b, sC, b))
            L.append("v_cvt_pk_bf16_f32 v%d, v%d, v%d" % (x, a, b))
        return L
    def rowreduce(self, regs, op, t0):
        L = []
        for sw in ("v_permlane16_swap_b32", "v_permlane32_swap_b32"):
            for q, r in enumerate(regs): L.append("v_mov_b32 v%d, v%d" % (t0+q, r))
            L.append("s_nop 0")
            for q, r in enumerate(regs): L.append("%s v%d, v%d" % (sw, r, t0+q))
            L.append("s_nop 0")
            for q, r in enumerate(regs): L.append("%s v%d, v%d, v%d" % (op, r, r, t0+q))
        return L
    def tile_max(self, m, acc=False):
        L = []
        for q in range(6):
            x = S(0, q)
            if acc: L.append("v_max3_f32 v%d, v%d, v%d, v%d" % (m[q], m[q], x, x+1)); L.append("v_max_f32 v%d, v%d, v%d" % (m[q], m[q], x+2))
            else: L.append("v_max3_f32 v%d, v%d, v%d, v%d" % (m[q], x, x+1, x+2))
            L.append("v_max3_f32 v%d, v%d, v%d, v%d" % (m[q], m[q], x+3, x+4))
            L.append("v_max3_f32 v%d, v%d, v%d, v%d" % (m[q], m[q], x+5, x+6))
            L.append("v_max_f32 v%d, v%d, v%d" % (m[q], m[q], x+7))
        return L
    def first_max(self):
        m = [TMP + q for q in range(6)]
        return self.tile_max(m) + self.rowreduce(m, "v_max_f32", TMP+8)
    def apply_max(self):
        L = []
        for q in range(6):
            m = TMP + q
            L.append("v_sub_f32 v%d, 0, v%d" % (m, m))
            for r in range(4): L.append("v_mov_b32 v%d, v%d" % (CINIT + 4*q + r, m))
            for e in range(8): L.append("v_add_f32 v%d, v%d, v%d" % (S(0,q,e), S(0,q,e), m))
            L.append("v_mov_b32 v%d, 0" % (LSUM+q))
        return L

    def epilogue(self, with_q):
        c = self.c
        L = []
        ls = [LSUM + q for q in range(6)]
        QA = 28
        if with_q:
            L += self.qaddr(QA) + self.qreads(0, QA) + self.qreads(1, QA)
        L += self.rowreduce(ls, "v_add_f32", TMP+8)
        if c.redo:
            L.append("v_add_f32 v%d, v%d, v%d" % (TMP, ls[0], ls[1]))
            for q in range(2, 6): L.append("v_add_f32 v%d, v%d, v%d" % (TMP, TMP, ls[q]))
            L.append("s_mov_b32 s%d, 0x%x" % (sT0, f2u(2.0 ** c.thr)))
            L.append("v_cmp_nge_f32 vcc, s%d, v%d" % (sT0, TMP))
            L.append("s_lshl_b32 s%d, 1, s%d" % (sT0+1, sPH))
            L.append("s_nop 3")
            L.append("s_cmp_lg_u64 vcc, 0")
            L.append("s_cselect_b32 s%d, s%d, 0" % (sT0+1, sT0+1))
            L.append("s_or_b32 s%d, s%d, s%d" % (sFLAG, sFLAG, sT0+1))
        for q in range(6): L.append("v_rcp_f32 v%d, v%d" % (ls[q], ls[q]))
        WA = 16; RA = 24; TV = 32
        L += ["v_mbcnt_lo_u32_b32 v0, -1, 0", "v_mbcnt_hi_u32_b32 v0, -1, v0",
              "v_and_b32 v2, 15, v0", "v_lshrrev_b32 v3, 4, v0",
              "v_lshlrev_b32 v4, 1, v2", "v_xor_b32 v4, v4, v3", "v_lshlrev_b32 v4, 3, v4", "v_lshl_add_u32 v4, v2, 8, v4",
              "v_add_u32 v4, s%d, v4" % sQL]
        for dt in range(8): L.append("v_xor_b32 v%d, 0x%x, v4" % (WA + dt, dt*32))
        L += ["v_xor_b32 v4, v2, v3", "v_lshlrev_b32 v4, 4, v4", "v_lshl_add_u32 v4, v3, 8, v4", "v_add_u32 v4, s%d, v4" % sQL]
        for k in range(4): L.append("v_xor_b32 v%d, 0x%x, v4" % (RA + k, k*64))
        RB = [64, 80]
        st = lambda qt, k: "buffer_store_dwordx4 %s, v%d, %s, s%d offen offset:%d%s" % (vr(RB[qt & 1] + 4*k, 4), VOOFF, sr(sO,4), sT2, 1024*k, (" " + c.nto) if c.nto else "")
        rb = lambda qt: ["ds_read_b128 %s, v%d offset:%d" % (vr(RB[qt & 1] + 4*k, 4), RA + k, 4096*(qt & 1) + 1024*k) for k in range(4)]
        L.append("s_waitcnt lgkmcnt(0)")
        for qt in range(6):
            half = 4096*(qt & 1)
            nds = 0
            for dt in range(8):
                tv = TV + (dt % 4)*6
                x = O(qt, dt)
                for i in range(4): L.append("v_accvgpr_read_b32 v%d, a%d" % (tv+i, x+i))
                if dt == 2 and qt > 0:
                    L.append("s_waitcnt lgkmcnt(2)")
                    L += rb(qt-1)
                    if with_q and qt + 1 < 6 and qt >= 1:
                        L += self.qreads(qt + 1, QA); nds += 4
                for i in range(4): L.append("v_mul_f32 v%d, v%d, v%d" % (tv+i, tv+i, ls[qt]))
                L.append("v_cvt_pk_bf16_f32 v%d, v%d, v%d" % (tv+4, tv+0, tv+1))
                L.append("v_cvt_pk_bf16_f32 v%d, v%d, v%d" % (tv+5, tv+2, tv+3))
                L.append("ds_write_b64 v%d, %s offset:%d" % (WA + dt, vr(tv+4, 2), half))
                if dt >= 2: nds += 1
                if dt == 5 and qt > 0:
                    L.append("s_waitcnt lgkmcnt(%d)" % nds)
                    L.append("s_add_u32 s%d, s%d, 0x%x" % (sT2, sPO, (qt-1)*4096))
                    L += [st(qt-1, 0), st(qt-1, 1)]
                if dt == 7 and qt > 0:
                    L += [st(qt-1, 2), st(qt-1, 3)]
            if with_q:
                if qt >= 2: L.append("s_waitcnt lgkmcnt(8)")
                L += self.prescale(qt)
        L.append("s_waitcnt lgkmcnt(0)")
        L += rb(5)
        L.append("s_add_u32 s%d, s%d, 0x%x" % (sT2, sPO, 5*4096))
        for k in range(4):
            L.append("s_waitcnt lgkmcnt(%d)" % (3 - k))
            L.append(st(5, k))
        return L

    def stamp(self):
        if not self.c.stamp: return []
        return ["s_memtime s[92:93]", "s_memrealtime s[94:95]", "s_waitcnt lgkmcnt(0)",
                "s_mov_b32 s90, m0", "s_mov_b32 m0, s91", "s_nop 0", "v_writelane_b32 v%d, s92, m0" % STV, "v_writelane_b32 v%d, s94, m0" % (STV+1), "s_mov_b32 m0, s90", "s_add_u32 s91, s91, 1"]
    def stamp_out(self):
        L = self.stamp() + ["s_waitcnt lgkmcnt(0) vmcnt(0)"] + self.stamp()
        L += ["s_lshl_b32 s30, s2, 2", "s_add_u32 s30, s30, s%d" % sW, "s_lshl_b32 s30, s30, 9",
              "s_mov_b32 s68, s60", "s_mov_b32 s69, s61", "s_mov_b32 s70, 0x100000", "s_mov_b32 s71, 0x20000",
              "v_mbcnt_lo_u32_b32 v1, -1, 0", "v_mbcnt_hi_u32_b32 v1, -1, v1", "v_lshlrev_b32 v1, 2, v1",
              "s_getreg_b32 s31, hwreg(HW_REG_XCC_ID)", "v_writelane_b32 v%d, s31, 63" % STV, "v_writelane_b32 v%d, s91, 63" % (STV+1),
              "buffer_store_dword v%d, v1, s[68:71], s30 offen" % STV,
              "buffer_store_dword v%d, v1, s[68:71], s30 offen offset:256" % (STV+1)]
        return L

    def prepass(self):
        m = [LSUM + q for q in range(6)]
        L = []
        for q in range(6): L.append("v_mov_b32 v%d, 0xff800000" % m[q])
        L += ["s_lshl_b32 s%d, s%d, 18" % (sT2, sHH), "s_mov_b32 s%d, 0" % (sT2+1)]
        for s in range(4): L.append("v_add_u32 v%d, 0x%x, v%d" % (TMP+s, QREG, KADDR+s))
        L += ["s_waitcnt lgkmcnt(0)", "s_barrier"]
        L.append("L_pp:")
        body = [self.m0set(QREG), "s_nop 0",
                "buffer_load_dwordx4 v%d, %s, s%d offen lds" % (VDOFF, sr(sK,4), sT2),
                "buffer_load_dwordx4 v%d, %s, s%d offen offset:2048 lds" % (VDOFF, sr(sK,4), sT2),
                "s_waitcnt vmcnt(0)", "s_barrier"]
        for j in range(8):
            body.append("ds_read_b128 %s, v%d offset:%d" % (ar(frag(j),4), TMP + (j & 3), 4096*(j >> 2)))
        body.append("s_waitcnt lgkmcnt(0)")
        for j in range(8):
            for qt in range(6): body.append(self.qk(0, j >> 2, j & 3, qt, frag(j), raw=True))
        body += ["s_nop 7", "s_barrier"]
        body += self.tile_max(m, acc=True)
        body += ["s_add_u32 s%d, s%d, 0x2000" % (sT2, sT2), "s_add_u32 s%d, s%d, 1" % (sT2+1, sT2+1), "s_cmp_lt_u32 s%d, 32" % (sT2+1), "s_cbranch_scc1 L_pp"]
        L += body
        L += self.rowreduce(m, "v_max_f32", TMP+8)
        return L

    def head_start(self, hh, static):
        c = self.c
        A = [self.vmwait("k0", ["K%d_0" % hh]), "s_barrier"] if False else []
        A += self.qk_phase(0, True, [])
        b = []
        if not c.nodma: b.append(self.vmwait("pm2", ["K%d_1" % hh]))
        b.append("s_barrier")
        A += b
        d2 = self.dpieces(-2, hh) if not c.nodma else []
        fm = self.first_max()
        if static and c.redo:
            A += self.flat(d2)
            A += ["s_cmp_eq_u32 s%d, 0" % sMODE, "s_cbranch_scc1 L_fm"]
            A += ["v_mov_b32 v%d, v%d" % (TMP+q, LSUM+q) for q in range(6)] + ["s_branch L_fm2", "L_fm:"] + fm + ["L_fm2:"]
        else:
            A += self.flat(d2) + fm
        if len(self.flat(d2)) < 8: A.append("s_nop 7")
        A += self.apply_max()
        sal = {}; mem = {}
        pre = [(j, t) for (g, j, t) in self.vsched(0) if g < 0]
        gb = 22
        b = []
        if not c.nodma: b.append(self.vmwait("pro", ["V%d_0" % hh, "K%d_2" % hh]))
        gb = 30
        b = ["s_waitcnt lgkmcnt(0)"] if c.nodma else [b[0].replace("s_waitcnt ", "s_waitcnt lgkmcnt(0) ")]
        put(sal, gb, b + ["s_barrier"])
        g = gb + 1
        for (j, t) in pre:
            g = max(g, 6*j + 7) | 1
            put(mem, g, [t]); g += 2
        assert max(mem) < 48, mem
        if not c.nodma:
            for gg, (su, dm, po) in zip((32, 36, 40, 44), self.dpieces(-1, hh)):
                put(sal, gg - 1, su); put(mem, gg, [dm]); put(sal, gg + 1, po)
        A += self.qk_phase(1, False, self.sm_linear(0), sal=sal, mem=mem)
        A.append("s_waitcnt lgkmcnt(%d)" % (len(pre) - 2))
        A.append("s_nop 0")
        return A

    def tail(self, hh):
        c = self.c
        mf = []
        for dt in range(8):
            for qt in range(6): mf.append(self.pv(30, dt, qt, frag(dt)))
        for qt in range(6):
            for dt in range(8): mf.append(self.pv(31, dt, qt, AFRAG2 + 4*dt))
        sal, mem, val = {}, {}, {}
        order = list(self.vsched(30))
        gb = 8
        b = []
        if not c.nodma: b.append(self.vmwait("t30", ["V%d_31" % hh]))
        if not c.nobar: b.append("s_barrier")
        put(sal, gb, b)
        g31 = [11 + 2*i for i in range(16)]
        i = 0
        for dt in range(8):
            for t in self.vread(AFRAG2 + 4*dt, dt, 31):
                order.append((g31[i], 20 + dt, t)); i += 1
        order.sort(key=lambda x: x[0])
        for (g, j, t) in order:
            if g >= 0: put(mem, g, [t])
        self.waits(order, [(j, 6*j) for j in range(1, 8)], sal, 48)
        put(sal, 47, ["s_waitcnt lgkmcnt(0)"])
        left = self.pace_softmax(1, mem, val, 0, 48, 0, 82, slack=3)
        if left:
            put(val, 82, left)
        return self.assemble(mf, sal, mem, val)

    def job_body(self, hh):
        c = self.c
        out = self.head_start(hh, True); tr = self.head_start(hh, False)
        def both(l): out.extend(l); tr.extend(l)
        both(["s_mov_b32 s%d, 0x%x" % (sQM, QREG), "s_add_u32 s%d, s%d, s%d" % (sQM, sQM, sMW),
              "s_add_u32 s%d, s%d, s%d" % (sT0, sHH, sMODE), "s_cmp_eq_u32 s%d, 0" % sT0, "s_cselect_b32 s%d, 12, 0" % sQP])
        both(self.stamp())
        both(self.iteration(0, hh, first=True))
        both(["s_mov_b32 s%d, 0" % sLOOP])
        out.append("L_loop:")
        for n in range(1, 30):
            ext = []
            if n % 2 == 1 and c.stampit: ext += self.stamp()
            if n % 4 == 1: ext += ["s_cmp_eq_u32 s%d, 7" % sLOOP, "s_cbranch_scc1 L_tail"]
            if n % 4 == 0: ext += ["s_add_u32 s%d, s%d, 1" % (sLOOP, sLOOP), "s_branch L_loop"]
            if n <= 4: out += self.iteration(n, hh) + ext
            tn = self.iteration(n, hh, static=False)
            if hh == 1: tn = [t for t in tn if 'tag=Q' not in t]
            tr += tn + ext
        out.append("L_tail:")
        both(self.stamp())
        both(self.tail(hh))
        both(self.stamp())
        return out, tr

    def generate(self):
        c = self.c
        hdr = ["; Attention forward softmax(Q K^T / sqrt(d)) V for gfx950, hand-scheduled (emitted by my own generator script).",
               "; One workgroup = 4 waves x 96 query rows = one head at a time, two heads per workgroup, 16x16x32 bf16 MFMA.",
               "; @launch grid=(256,1,1) block=(256,1,1) lds=163840",
               '.amdgcn_target "amdgcn-amd-amdhsa--gfx950"', ".text", ".globl %s" % KN, ".p2align 8",
               ".type %s,@function" % KN, "%s:" % KN]
        out = list(hdr); tr = []
        def both(l): out.extend(l); tr.extend(l)
        both(self.setup())
        both(self.stamp())
        out.append("L_cold:")
        out += self.cold_start(0, True); tr += self.cold_start(0, False)
        if c.redo:
            out += ["s_cmp_eq_u32 s%d, 0" % sMODE, "s_cbranch_scc1 L_body"] + self.prepass()
        out.append("L_body:")
        both(self.stamp())
        o, t = self.job_body(0)
        out += o; tr += t
        both(["s_mov_b32 s%d, s%d" % (sPO, sQO), "s_mov_b32 s%d, s%d" % (sPH, sHH),
              "s_add_u32 s%d, s%d, s%d" % (sT0, sHH, sMODE), "s_cmp_eq_u32 s%d, 0" % sT0])
        out += ["s_cbranch_scc0 L_final"]
        ew = self.epilogue(True)
        both(["s_nop 7"] + ew)
        both(["s_mov_b32 s%d, 1" % sHH, "s_add_u32 s%d, s%d, 0x18000" % (sQO, sQO)])
        out += ["s_branch L_body"]
        tr += self.stamp()
        o, t = self.job_body(1)
        ef = self.epilogue(False)
        tr += t + ["s_nop 7"] + ef
        out += ["L_final:", "s_nop 7"] + ef
        if c.redo:
            out += ["s_cmp_lg_u32 s%d, 0" % sMODE, "s_cbranch_scc1 L_pick",
                    "s_lshl_b32 s%d, s%d, 2" % (sT0, sW), "v_mov_b32 v1, s%d" % sT0, "v_mov_b32 v2, s%d" % sFLAG,
                    "ds_write_b32 v1, v2", "s_waitcnt lgkmcnt(0)", "s_barrier",
                    "v_mov_b32 v1, 0", "ds_read_b128 v[4:7], v1", "s_waitcnt lgkmcnt(0)",
                    "v_or_b32 v4, v4, v5", "v_or_b32 v6, v6, v7", "v_or_b32 v4, v4, v6", "s_nop 1",
                    "v_readfirstlane_b32 s%d, v4" % sFLAG, "s_nop 3",
                    "L_pick:",
                    "s_and_b32 s%d, s%d, 3" % (sFLAG, sFLAG),
                    "s_cmp_eq_u32 s%d, 0" % sFLAG, "s_cbranch_scc1 L_done",
                    "s_ff1_i32_b32 s%d, s%d" % (sHH, sFLAG), "s_bitset0_b32 s%d, s%d" % (sFLAG, sHH),
                    "s_mov_b32 s%d, 1" % sMODE,
                    "s_waitcnt vmcnt(0) lgkmcnt(0)", "s_barrier", "s_branch L_cold", "L_done:"]
        if c.stamp: out += self.stamp_out()
        out += ["L_end:", "s_endpgm"]
        out += [".section .rodata,\"a\"", ".p2align 6", ".amdhsa_kernel %s" % KN,
                "  .amdhsa_next_free_vgpr 512", "  .amdhsa_next_free_sgpr 96", "  .amdhsa_accum_offset 256",
                "  .amdhsa_group_segment_fixed_size 0", "  .amdhsa_kernarg_size 48", "  .amdhsa_user_sgpr_count 2",
                "  .amdhsa_user_sgpr_kernarg_segment_ptr 1", "  .amdhsa_system_sgpr_workgroup_id_x 1",
                "  .amdhsa_float_denorm_mode_32 3", ".end_amdhsa_kernel"]
        self.out = out; self.trace = tr
        self.resolve()
        return "\n".join(self.out) + "\n"

    def resolve(self):
        q = []; best = {}; done = -1
        for t in self.trace:
            s = t.split(';')[0].strip()
            if s.startswith('buffer_') or s.startswith('global_'):
                m = re.search(r'tag=(\S+)', t)
                q.append(m.group(1) if m else None)
            m = re.search(r'vmcnt\(@(\w+)\).*need=(\S+)', t)
            if m:
                wid, needs = m.group(1), m.group(2).split(',')
                last = -1
                for nd in needs:
                    idx = [i for i, x in enumerate(q) if x == nd]
                    assert len(idx) == 2, (wid, nd, idx)
                    last = max(last, idx[-1])
                best.setdefault(wid, 63)
                if last > done:
                    best[wid] = min(best[wid], len(q) - 1 - last)
                    done = last
            else:
                m = re.search(r'vmcnt\((\d+)\)', s)
                if m: done = max(done, len(q) - 1 - int(m.group(1)))
        self.vm = best
        self.qorder = q
        fix = lambda t: re.sub(r'vmcnt\(@(\w+)\)', lambda m: "vmcnt(%d)" % min(63, best[m.group(1)]), t)
        self.out = [fix(t) for t in self.out]
        self.trace = [fix(t) for t in self.trace if not t.endswith(':')]

def main():
    ap = argparse.ArgumentParser()
    ap.add_argument('-o', default='k.s')
    ap.add_argument('opts', nargs='*')
    a = ap.parse_args()
    c = Cfg()
    for o in a.opts:
        k, _, v = o.partition('=')
        if v == '': v = True
        else:
            try: v = eval(v)
            except Exception: pass
        assert hasattr(c, k), k
        setattr(c, k, v)
    g = G(c)
    txt = g.generate()
    errs = check(g.trace)
    e2, cnt = check_softmax_flow(g.trace)
    errs += e2
    assert cnt == (64*48, 64*48, 64*24), cnt
    for e in errs[:40]: print("HAZ:", e)
    print("%s: %d lines, %d hazards, vm=%s" % (a.o, len(g.out), len(errs), g.vm))
    open(a.o, 'w').write(txt)
if __name__ == "__main__": main()
```

```python
import sys
KN = "standalone__gqa_softmax__near_ridge_kernel"
def vr(a, n): return "v[%d:%d]" % (a, a+n-1) if n > 1 else "v%d" % a
def ar(a, n): return "a[%d:%d]" % (a, a+n-1) if n > 1 else "a%d" % a
def gen(shape=32, fill='', trips=60, out='mb.s', zero=False, qk=True, pv=True, lds=True, order='t', nb=4):
    L = []
    e = L.append
    e("; microbench"); e("; @launch grid=(256,1,1) block=(256,1,1) lds=163840")
    e('.amdgcn_target "amdgcn-amd-amdhsa--gfx950"'); e(".text"); e(".globl %s" % KN); e(".p2align 8"); e(".type %s,@function" % KN); e("%s:" % KN)
    e("s_cmp_ge_u32 s2, 0x100"); e("s_cbranch_scc1 L_end")
    e("s_load_dwordx4 s[32:35], s[0:1], 0"); e("s_load_dwordx4 s[36:39], s[0:1], 16"); e("s_load_dwordx2 s[60:61], s[0:1], 40")
    e("v_lshrrev_b32 v1, 6, v0"); e("s_nop 1"); e("v_readfirstlane_b32 s25, v1")
    e("v_lshlrev_b32 v222, 4, v0")
    e("s_waitcnt lgkmcnt(0)")
    e("s_lshl_b32 s30, s2, 18")
    for srd, p in ((4, 34), (8, 36), (12, 32)):
        if srd == 12: e("s_lshl_b32 s30, s2, 17")
        e("s_add_u32 s%d, s%d, s30" % (srd, p)); e("s_addc_u32 s%d, s%d, 0" % (srd+1, p+1)); e("s_mov_b32 s%d, 0x40000" % (srd+2)); e("s_mov_b32 s%d, 0x20000" % (srd+3))
    e("v_mov_b32 v2, v222")
    for i in range(16):
        e("s_mov_b32 s31, 0x%x" % (i*4096))
        e("buffer_load_dwordx4 v[4:7], v222, s[4:7], s31 offen"); e("buffer_load_dwordx4 v[8:11], v222, s[8:11], s31 offen"); e("s_waitcnt vmcnt(0)")
        e("v_add_u32 v3, 0x%x, v222" % (i*4096)); e("ds_write_b128 v3, v[4:7]"); e("v_add_u32 v3, 0x%x, v222" % (65536 + i*4096)); e("ds_write_b128 v3, v[8:11]")
        e("s_waitcnt lgkmcnt(0)")
    for i in range(24):
        e("s_mov_b32 s31, 0x%x" % (i*4096))
        dst = ar(192 + 4*i, 4) if i < 16 else vr(160 + 4*(i-16), 4)
        e("buffer_load_dwordx4 %s, v222, s[12:15], s31 offen" % dst)
    for i in range(4):
        e("s_mov_b32 s31, 0x%x" % (0x20000 + i*4096)); e("buffer_load_dwordx4 %s, v222, s[4:7], s31 offen" % vr(192 + 4*i, 4))
    for i in range(24):
        e("s_mov_b32 s31, 0x%x" % (0x10000 + i*4096)); e("buffer_load_dwordx4 %s, v222, s[4:7], s31 offen" % vr(16 + 4*i, 4))
    e("s_waitcnt vmcnt(0)")
    if zero:
        for i in range(16, 208): e("v_mov_b32 v%d, 0" % i)
        for i in range(192, 256): e("v_accvgpr_write_b32 a%d, 0" % i)
    for i in range(192): e("v_accvgpr_write_b32 a%d, 0" % i)
    for i in range(48):
        if zero: e("v_mov_b32 v%d, 0" % (112+i))
        else:
            e("v_and_b32 v%d, 0x007f007f, v%d" % (112+i, 16+i)); e("v_or_b32 v%d, 0x3e803e80, v%d" % (112+i, 112+i))
    e("v_and_b32 v2, 63, v0"); e("v_lshlrev_b32 v208, 4, v2"); e("v_add_u32 v209, 0x10000, v208")
    e("v_lshlrev_b32 v210, 3, v2"); e("v_add_u32 v210, 0x10000, v210")
    e("s_barrier")
    e("s_memtime s[40:41]"); e("s_memrealtime s[42:43]"); e("s_waitcnt lgkmcnt(0)")
    e("s_mov_b32 s28, 0")
    e("L_loop:")
    n = 0
    def fillers(g, per):
        r = []
        k = g % 48
        x = 64 + k
        src = 16 + k
        if 'e' in fill: r.append("v_exp_f32 v%d, v%d" % (x, src))
        k1 = (k + 47) % 48
        if 'a' in fill: r.append("v_add_f32 v%d, v%d, v%d" % (223 + k1 // 16, 223 + k1 // 16, 64 + k1))
        if 'c' in fill and (k1 & 1): r.append("v_cvt_pk_bf16_f32 v%d, v%d, v%d" % (232 + (k1 >> 1) % 24, 64 + k1 - 1, 64 + k1))
        if 'f' in fill: r.append("v_fma_f32 v%d, v%d, v226, v227" % (228, src))
        return r
    for grp in range(16):
        ispv = grp < 8
        if (ispv and not pv) or ((not ispv) and not qk): ispv = not ispv
        f = 192 + 4*(grp % nb)
        rd = []
        if 'l' in fill:
            fn = 192 + 4*((grp + 2) % 4)
            if ((grp + 2) % 16) < 8:
                rd = ["ds_read_b64_tr_b16 %s, v210 offset:%d" % (vr(fn, 2), (grp % 8) * 2048), "ds_read_b64_tr_b16 %s, v210 offset:%d" % (vr(fn+2, 2), (grp % 8) * 2048 + 1024)]
            else:
                rd = ["ds_read_b128 %s, v208 offset:%d" % (vr(fn, 4), (grp % 8) * 4096 + 1024)]
        if shape == 32:
            for t in range(3):
                if ispv:
                    acc = ar(64*t + 16*(grp & 3), 16); b = vr(112 + 16*t + 4*((grp >> 2) & 1), 4)
                    e("v_mfma_f32_32x32x16_bf16 %s, %s, %s, %s" % (acc, vr(f, 4), b, acc))
                else:
                    s = grp & 7
                    d = vr(16 + 16*t, 16) if False else None
                    acc = vr(16 + 16*t, 16)
                    b = ar(192 + 32*t + 4*s, 4) if t < 2 else vr(160 + 4*s, 4)
                    c = "0" if s == 0 else acc
                    e("v_mfma_f32_32x32x16_bf16 %s, %s, %s, %s" % (acc if True else d, vr(f, 4), b, c))
                fl = fillers_real(fill, 3*grp + t)
                if t == 0 and rd: fl = fl[:1] + rd[:1] + fl[1:]
                if t == 1 and len(rd) > 1: fl = fl[:1] + rd[1:] + fl[1:]
                if t == 2 and 'l' in fill: fl.append("s_waitcnt lgkmcnt(%d)" % (2 if ((grp + 2) % 16) < 8 else 1))
                L.extend(fl)
        else:
            for t in range(6):
                if ispv:
                    dt = grp & 7
                    acc = ar(32*t + 4*dt, 4); b = vr(112 + 4*t + 24*(grp & 1), 4)
                    e("v_mfma_f32_16x16x32_bf16 %s, %s, %s, %s" % (acc, vr(f, 4), b, acc))
                else:
                    s = grp & 3; kt = (grp >> 2) & 1
                    acc = vr(16 + 8*t + 4*kt, 4)
                    qi = 4*t + s
                    b = ar(192 + 4*qi, 4) if qi < 16 else vr(160 + 4*(qi - 16), 4)
                    c = "0" if s == 0 else acc
                    e("v_mfma_f32_16x16x32_bf16 %s, %s, %s, %s" % (acc, vr(f, 4), b, c))
                big = fillers_real(fill, 3*grp + t // 2)
                h = (len(big) + 1) // 2
                fl = big[:1] if (t % 2 == 0) else big[1:]
                if t == 1 and rd: fl = fl + rd[:1]
                if t == 3 and len(rd) > 1: fl = fl + rd[1:]
                if t == 5 and 'l' in fill: fl.append("s_waitcnt lgkmcnt(%d)" % (2 if ((grp + 2) % 16) < 8 else 1))
                L.extend(fl)
    e("s_add_u32 s28, s28, 1"); e("s_cmp_lt_u32 s28, %d" % trips); e("s_cbranch_scc1 L_loop")
    e("s_memtime s[44:45]"); e("s_memrealtime s[46:47]"); e("s_waitcnt lgkmcnt(0)")
    e("s_lshl_b32 s30, s2, 2"); e("s_add_u32 s30, s30, s25"); e("s_lshl_b32 s30, s30, 4")
    e("s_mov_b32 s68, s60"); e("s_mov_b32 s69, s61"); e("s_mov_b32 s70, 0x100000"); e("s_mov_b32 s71, 0x20000")
    e("v_mov_b32 v1, 0"); e("s_mov_b64 exec, 1")
    for i, s in enumerate((40, 42, 44, 46)):
        e("v_mov_b32 v2, s%d" % s); e("buffer_store_dword v2, v1, s[68:71], s30 offen offset:%d" % (4*i))
    e("L_end:"); e("s_endpgm")
    L += [".section .rodata,\"a\"", ".p2align 6", ".amdhsa_kernel %s" % KN,
          "  .amdhsa_next_free_vgpr 512", "  .amdhsa_next_free_sgpr 96", "  .amdhsa_accum_offset 256",
          "  .amdhsa_group_segment_fixed_size 0", "  .amdhsa_kernarg_size 48", "  .amdhsa_user_sgpr_count 2",
          "  .amdhsa_user_sgpr_kernarg_segment_ptr 1", "  .amdhsa_system_sgpr_workgroup_id_x 1",
          "  .amdhsa_float_denorm_mode_32 3", ".end_amdhsa_kernel"]
    open(out, 'w').write("\n".join(L) + "\n")
def fillers_real(fill, g):
    r = []
    k = g % 48
    src = 64 + k
    dst = 232 + (k % 8)
    k1 = (k + 47) % 48
    d1 = 232 + (k1 % 8)
    if 'f' in fill: r.append("v_fma_f32 v%d, v%d, v226, v227" % (244 + (k % 4), src))
    if 'e' in fill: r.append("v_exp_f32 v%d, v%d" % (dst, src))
    if 'a' in fill: r.append("v_add_f32 v%d, v%d, v%d" % (223 + k1 // 16, 223 + k1 // 16, d1))
    if 'c' in fill and (k1 & 1): r.append("v_cvt_pk_bf16_f32 v%d, v%d, v%d" % (240 + (k1 >> 1) % 4, 232 + ((k1 - 1) % 8), d1))
    return r
if __name__ == "__main__":
    import build
    vars_ = {
      'm32': dict(shape=32), 'm16': dict(shape=16),
      'm32z': dict(shape=32, zero=True), 'm16z': dict(shape=16, zero=True),
      'm32eac': dict(shape=32, fill='eac'), 'm16eac': dict(shape=16, fill='eac'),
      'm32eacl': dict(shape=32, fill='eacl'), 'm16eacl': dict(shape=16, fill='eacl'),
      'm32l': dict(shape=32, fill='l'), 'm16l': dict(shape=16, fill='l'),
      'm32feacl': dict(shape=32, fill='feacl'), 'm16feacl': dict(shape=16, fill='feacl'),
    }
    for k in (sys.argv[1:] or vars_):
        gen(out=k + '.s', **vars_[k]); build.build(k + '.s')
```

```python
import sys
from mb import KN, vr, ar
import build
def gen(out, sums='add', shape=16, fragA=True, swap_pv=False, swap_qk=False, order='phase', trips=60, fill=True, qA=False, sameA=True):
    L = []; e = L.append
    e("; microbench"); e("; @launch grid=(256,1,1) block=(256,1,1) lds=163840")
    e('.amdgcn_target "amdgcn-amd-amdhsa--gfx950"'); e(".text"); e(".globl %s" % KN); e(".p2align 8"); e(".type %s,@function" % KN); e("%s:" % KN)
    e("s_cmp_ge_u32 s2, 0x100"); e("s_cbranch_scc1 L_end")
    e("s_load_dwordx4 s[32:35], s[0:1], 0"); e("s_load_dwordx4 s[36:39], s[0:1], 16"); e("s_load_dwordx2 s[60:61], s[0:1], 40")
    e("v_lshrrev_b32 v1, 6, v0"); e("s_nop 1"); e("v_readfirstlane_b32 s25, v1")
    e("v_lshlrev_b32 v222, 4, v0")
    e("s_waitcnt lgkmcnt(0)")
    e("s_lshl_b32 s30, s2, 19")
    for srd, p in ((4, 34), (8, 36), (12, 32)):
        if srd == 12: e("s_lshl_b32 s30, s2, 17")
        e("s_add_u32 s%d, s%d, s30" % (srd, p)); e("s_addc_u32 s%d, s%d, 0" % (srd+1, p+1)); e("s_mov_b32 s%d, 0x%x" % (srd+2, 0x40000 if srd == 12 else 0x80000)); e("s_mov_b32 s%d, 0x20000" % (srd+3))
    for i in range(16):
        e("s_mov_b32 s31, 0x%x" % (i*4096))
        e("buffer_load_dwordx4 v[4:7], v222, s[4:7], s31 offen"); e("buffer_load_dwordx4 v[8:11], v222, s[8:11], s31 offen"); e("s_waitcnt vmcnt(0)")
        e("v_add_u32 v3, 0x%x, v222" % (i*4096)); e("ds_write_b128 v3, v[4:7]"); e("v_add_u32 v3, 0x%x, v222" % (65536 + i*4096)); e("ds_write_b128 v3, v[8:11]")
        e("s_waitcnt lgkmcnt(0)")
    for i in range(24):
        e("s_mov_b32 s31, 0x%x" % (i*4096))
        e("buffer_load_dwordx4 %s, v222, s[12:15], s31 offen" % vr(112 + 4*i, 4))
    for i in range(24):
        e("s_mov_b32 s31, 0x%x" % (0x10000 + i*4096)); e("buffer_load_dwordx4 %s, v222, s[4:7], s31 offen" % vr(16 + 4*i, 4))
    e("s_waitcnt vmcnt(0)")
    for i in range(256): e("v_accvgpr_write_b32 a%d, 0" % i)
    for i in range(24):
        e("v_and_b32 v%d, 0x01ff01ff, v%d" % (64+i, 16+i)); e("v_or_b32 v%d, 0x3c003c00, v%d" % (64+i, 64+i))
    if qA:
        for i in range(64): e("v_accvgpr_write_b32 a%d, v%d" % (192+i, 112+i))
    e("v_and_b32 v2, 63, v0"); e("v_lshlrev_b32 v232, 4, v2"); e("v_lshlrev_b32 v233, 3, v2"); e("v_add_u32 v233, 0x10000, v233")
    for i in range(234, 240): e("v_mov_b32 v%d, 0x3f803f80" % i)
    e("s_barrier")
    e("s_memtime s[40:41]"); e("s_memrealtime s[42:43]"); e("s_waitcnt lgkmcnt(0)")
    e("s_mov_b32 s28, 0")
    e("L_loop:")
    FR = (lambda j, n=4, o=0: ar(224 + 4*(j % 8) + o, n)) if fragA else (lambda j, n=4, o=0: vr(208 + 4*(j % 6) + o, n))
    NB = 8 if fragA else 6
    groups = []
    for j in range(16):
        mf = []
        for t in range(6):
            if j < 8:
                acc = ar(32*t + 4*j, 4); p = vr(64 + 4*t, 4)
                a, b = (p, FR(j)) if swap_pv else (FR(j), p)
                mf.append("v_mfma_f32_16x16x32_bf16 %s, %s, %s, %s" % (acc, a, b, acc))
            else:
                s = j & 3; kt = (j >> 2) & 1
                acc = vr(16 + 8*t + 4*kt, 4); qi = 4*t + s
                q = ar(192 + 4*qi, 4) if (qA and qi < 8) else vr(112 + 4*qi, 4)
                a, b = (q, FR(j)) if swap_qk else (FR(j), q)
                mf.append("v_mfma_f32_16x16x32_bf16 %s, %s, %s, %s" % (acc, a, b, "0" if s == 0 else acc))
        groups.append(mf)
    seq = []
    if order == 'phase':
        for j in range(16): seq += [(j, m) for m in groups[j]]
    elif order == 'pvq':
        for t in range(6):
            for j in range(8): seq.append((j, groups[j][t]))
        for j in range(8, 16): seq += [(j, m) for m in groups[j]]
    elif order == 'qkchain':
        for j in range(8): seq += [(j, m) for m in groups[j]]
        for t in range(6):
            for kt in range(2):
                for s_ in range(4): seq.append((8 + 4*kt + s_, groups[8 + 4*kt + s_][t]))
    elif order == 'pvq_chain':
        for t in range(6):
            for j in range(8): seq.append((j, groups[j][t]))
        for t in range(6):
            for kt in range(2):
                for s_ in range(4): seq.append((8 + 4*kt + s_, groups[8 + 4*kt + s_][t]))
    elif order == 'mix_chain':
        for t in range(6):
            for j in range(8): seq.append((j, groups[j][t]))
            for kt in range(2):
                for s_ in range(4): seq.append((8 + 4*kt + s_, groups[8 + 4*kt + s_][t]))
    elif order == 'qkchain2':
        for j in range(8): seq += [(j, m) for m in groups[j]]
        for t in range(6):
            for s_ in range(4):
                for kt in range(2): seq.append((8 + 4*kt + s_, groups[8 + 4*kt + s_][t]))
    elif order == 'bothq':
        for t in range(6):
            for j in range(8): seq.append((j, groups[j][t]))
        for t in range(6):
            for s_ in range(4):
                for kt in range(2): seq.append((8 + 4*kt + s_, groups[8 + 4*kt + s_][t]))
    else:
        for j in range(8): seq += [(j, m) for m in groups[j]] + [(8+j, m) for m in groups[8+j]]
    if shape == 32:
        M = "v_mfma_f32_32x32x16_bf16"
        seq = []
        def pv(t, u, dt):
            acc = ar(64*t + 16*dt, 16); p = vr(64 + 8*t + 4*u, 4); f = FR(4*u + dt)
            a, b = (p, f) if swap_pv else (f, p)
            return (4*u + dt, "%s %s, %s, %s, %s" % (M, acc, a, b, acc))
        def qk(t, s_):
            acc = vr(16 + 16*t, 16); q = vr(112 + 32*t + 4*s_, 4)
            return (8 + s_, "%s %s, %s, %s, %s" % (M, acc, FR(s_), q, "0" if s_ == 0 else acc))
        if order == 'phase':
            for u in range(2):
                for dt in range(4):
                    for t in range(3): seq.append(pv(t, u, dt))
            for s_ in range(8):
                for t in range(3): seq.append(qk(t, s_))
        elif order == 'qkchain':
            for u in range(2):
                for dt in range(4):
                    for t in range(3): seq.append(pv(t, u, dt))
            for t in range(3):
                for s_ in range(8): seq.append(qk(t, s_))
        elif order == 'allchain':
            for dt in range(4):
                for t in range(3):
                    for u in range(2): seq.append(pv(t, u, dt))
            for t in range(3):
                for s_ in range(8): seq.append(qk(t, s_))
    gaps = [[m] for (j, m) in seq]
    NG = len(gaps)
    if fill:
        def reads(j):
            g = j % 16
            if g < 8: return ["ds_read_b64_tr_b16 %s, v233 offset:%d" % (FR(j, 2), g*2048), "ds_read_b64_tr_b16 %s, v233 offset:%d" % (FR(j, 2, 2), g*2048 + 1024)]
            return ["ds_read_b128 %s, v232 offset:%d" % (FR(j), g*4096 + 1024)]
        gorder = list(range(16))
        rd = []
        for i in range(16): rd += reads(gorder[(i + 3) % 16])
        if shape == 32:
            for i, r in enumerate(rd): gaps[2*i].append(r)
            for k in range(48):
                src = 88 + (k % 24); dst = k % 8; k1 = (k + 47) % 48; d1 = k1 % 8
                if k % 3 == 2: gaps[k].insert(1, "s_waitcnt lgkmcnt(4)")
                gaps[k].append("v_exp_f32 v%d, v%d" % (dst, src))
                gaps[k].append("v_add_f32 v%d, v%d, v%d" % (246 + k1 // 8, 246 + k1 // 8, d1))
                if k1 & 1: gaps[k].append("v_cvt_pk_bf16_f32 v%d, v%d, v%d" % (8 + (k1 >> 1) % 4, (k1 - 1) % 8, d1))
        else:
          for i, r in enumerate(rd): gaps[4*i + 1].append(r)
        for i in range(96 if shape == 16 else 0):
            k = (i // 2) % 48
            src = 88 + (k % 24); dst = 0 + (k % 8)
            if i % 2 == 0: gaps[i].append("v_exp_f32 v%d, v%d" % (dst, src))
            else:
                if sums == 'add': gaps[i].append("v_add_f32 v%d, v%d, v%d" % (246 + k // 8, 246 + k // 8, dst))
                if k & 1: gaps[i].append("v_cvt_pk_bf16_f32 v%d, v%d, v%d" % (8 + (k >> 1) % 4, (k - 1) % 8, dst))
            if i % 6 == 5: gaps[i].insert(1, "s_waitcnt lgkmcnt(4)")
    if sums in ('m4', 'm16'):
        ins = []
        for t in range(6):
            p = 64 + 4*t
            if sums == 'm4':
                acc = vr(232 + 0, 4) if False else ar(192 + 4*t, 4)
                ins.append((10 + 14*t, ["v_mfma_f32_4x4x4_16b_bf16 %s, v[234:235], %s, %s" % (acc, vr(p, 2), acc), "v_mfma_f32_4x4x4_16b_bf16 %s, v[234:235], %s, %s" % (acc, vr(p+2, 2), acc)]))
            else:
                acc = ar(192 + 4*t, 4)
                ins.append((10 + 14*t, ["v_mfma_f32_16x16x32_bf16 %s, v[236:239], %s, %s" % (acc, vr(p, 4), acc)]))
        for g, l in ins: gaps[g] = gaps[g] + l
    for g in gaps: L.extend(g)
    e("s_add_u32 s28, s28, 1"); e("s_cmp_lt_u32 s28, %d" % trips); e("s_cbranch_scc1 L_loop")
    e("s_memtime s[44:45]"); e("s_memrealtime s[46:47]"); e("s_waitcnt lgkmcnt(0)")
    e("s_lshl_b32 s30, s2, 2"); e("s_add_u32 s30, s30, s25"); e("s_lshl_b32 s30, s30, 4")
    e("s_mov_b32 s68, s60"); e("s_mov_b32 s69, s61"); e("s_mov_b32 s70, 0x100000"); e("s_mov_b32 s71, 0x20000")
    e("v_mov_b32 v1, 0"); e("s_mov_b64 exec, 1")
    for i, s in enumerate((40, 42, 44, 46)):
        e("v_mov_b32 v2, s%d" % s); e("buffer_store_dword v2, v1, s[68:71], s30 offen offset:%d" % (4*i))
    e("L_end:"); e("s_endpgm")
    L += [".section .rodata,\"a\"", ".p2align 6", ".amdhsa_kernel %s" % KN,
          "  .amdhsa_next_free_vgpr 512", "  .amdhsa_next_free_sgpr 96", "  .amdhsa_accum_offset 256",
          "  .amdhsa_group_segment_fixed_size 0", "  .amdhsa_kernarg_size 48", "  .amdhsa_user_sgpr_count 2",
          "  .amdhsa_user_sgpr_kernarg_segment_ptr 1", "  .amdhsa_system_sgpr_workgroup_id_x 1",
          "  .amdhsa_float_denorm_mode_32 3", ".end_amdhsa_kernel"]
    open(out + '.s', 'w').write("\n".join(L) + "\n")
    build.build(out + '.s')
V = {'n_c_add': dict(order='qkchain'), 'n_c_m4': dict(order='qkchain', sums='m4'), 'n_c_m16': dict(order='qkchain', sums='m16'), 'n_c_none': dict(order='qkchain', sums='none'), 'n_32base': dict(shape=32), 'n_32qk': dict(shape=32, order='qkchain'), 'n_32all': dict(shape=32, order='allchain'), 'n_32all_sw': dict(shape=32, order='allchain', swap_pv=True), 'n_pvqc': dict(order='pvq_chain'), 'n_mixc': dict(order='mix_chain'), 'n_pvqc_sw': dict(order='pvq_chain', swap_pv=True), 'n_chain': dict(order='qkchain'), 'n_chain2': dict(order='qkchain2'), 'n_chain_sw': dict(order='qkchain', swap_qk=True), 'n_pvq': dict(order='pvq'), 'n_pvq_sw': dict(order='pvq', swap_pv=True), 'n_bothq': dict(order='bothq'), 'n_bothq_swqk': dict(order='bothq', swap_qk=True), 'n_base': dict(), 'n_fragV': dict(fragA=False), 'n_swpv': dict(swap_pv=True), 'n_swqk': dict(swap_qk=True), 'n_swboth': dict(swap_pv=True, swap_qk=True),
     'n_alt': dict(order='alt'), 'n_qA': dict(qA=True, fragA=False)}
if __name__ == "__main__":
    for k in (sys.argv[1:] or V): gen(k, **V[k])
```
